```python
import torch

def _softmax(x, axis=-1):
    return torch.softmax(x, dim=axis)
def _gelu(x):
    return torch.nn.functional.gelu(x, approximate="tanh")
def _silu(x):
    return torch.nn.functional.silu(x)
def _sigmoid(x):
    return torch.sigmoid(x)
def _layernorm(x, axis=-1, eps=1e-5):
    m = x.mean(dim=axis, keepdim=True)
    v = x.var(dim=axis, keepdim=True, unbiased=False)
    return (x - m) / torch.sqrt(v + eps)
def _scatter_add(tgt, idx, src, axis=0):
    return tgt.clone().index_add_(axis, idx, src)
def _segment_sum(src, seg, n):
    out = torch.zeros((n,) + src.shape[1:], dtype=src.dtype)
    return out.index_add_(0, seg, src)
def _pad(x, pw):
    flat = tuple(v for pair in reversed(pw) for v in pair)
    return torch.nn.functional.pad(x, flat)

kernel_name = 'recurrent_scan__sliding_block_cached__geglu_ffn__decode'

def setup_inputs():

    _w = (lambda a: (lambda t: t.to(torch.bfloat16) if t.is_floating_point() else t)(torch.as_tensor(a)))
    def _A_setup():
        B, Sq, D = 1, 1, 512
        Hq, Hkv, Sk, Dh = 32, 32, 32768, 128
        assert Hq % Hkv == 0, (Hq, Hkv)
        return {
            "x": _w((lambda *s: torch.randn(*s, dtype=torch.bfloat16) * 0.05)(B, Sq, D)),
            "k_cache": _w((lambda *s: torch.randn(*s, dtype=torch.bfloat16) * 1.6)(B, Hkv, Sk, Dh)),
            "v_cache": _w((lambda *s: torch.randn(*s, dtype=torch.bfloat16) * 0.2)(B, Hkv, Sk, Dh)),
            "wq": _w((lambda *s: torch.randn(*s, dtype=torch.bfloat16) * 1.6)(D, Hq * Dh) * (D ** -0.5)),
            "wo": _w((lambda *s: torch.randn(*s, dtype=torch.bfloat16) * 0.2)(Hq * Dh, D) * ((Hq * Dh) ** -0.5)),
        }
    _A_in = _A_setup()

    def _B_setup():
        B, S, D, F = 1, 1, 512, 1376
        return {
            "x": _w((lambda *s: torch.randn(*s, dtype=torch.bfloat16) * 0.05)(B, S, D)),
            "w_gate": _w((lambda *s: torch.randn(*s, dtype=torch.bfloat16) * 0.1)(D, F)),
            "w_up": _w((lambda *s: torch.randn(*s, dtype=torch.bfloat16) * 0.1)(D, F)),
            "w_down": _w((lambda *s: torch.randn(*s, dtype=torch.bfloat16) * 0.1)(F, D)),
        }
    _B_in = _B_setup()

    return {
        "A_x": _A_in["x"],
        "A_k_cache": _A_in["k_cache"],
        "A_v_cache": _A_in["v_cache"],
        "A_wq": _A_in["wq"],
        "A_wo": _A_in["wo"],
        "B_x": _B_in["x"],
        "B_w_gate": _B_in["w_gate"],
        "B_w_up": _B_in["w_up"],
        "B_w_down": _B_in["w_down"],
    }

def reference(A_x, A_k_cache, A_v_cache, A_wq, A_wo, B_x, B_w_gate, B_w_up, B_w_down):
    def _A_ref(x, k_cache, v_cache, wq, wo):
        B, Sq, D = x.shape
        Hq, Dh = 32, 128
        Hkv, Sk = k_cache.shape[1], k_cache.shape[2]
        W = min(4096, max(256, Sk // 4))
        rep = Hq // Hkv
        q = (lambda x, *d: x.permute(*d))((x @ wq).reshape(B, Sq, Hq, Dh), 0, 2, 1, 3)
        k = (lambda x, n, axis: torch.repeat_interleave(x, n, dim=axis))(k_cache[:, :, Sk - W:, :], rep, axis=1)
        v = (lambda x, n, axis: torch.repeat_interleave(x, n, dim=axis))(v_cache[:, :, Sk - W:, :], rep, axis=1)
        scores = torch.einsum("bhqd,bhkd->bhqk", q, k) * (Dh ** -0.5)
        p = _softmax(scores, axis=-1)
        o = torch.einsum("bhqk,bhkd->bhqd", p, v)
        return (lambda x, *d: x.permute(*d))(o, 0, 2, 1, 3).reshape(B, Sq, Hq * Dh) @ wo

    def _B_ref(x, w_gate, w_up, w_down):
        return (_gelu(x @ w_gate) * (x @ w_up)) @ w_down

    x = A_x
    xn = _layernorm(x, axis=-1)
    s = _A_ref(xn, A_k_cache, A_v_cache, A_wq, A_wo)
    g = _silu(_B_ref(xn, B_w_gate, B_w_up, B_w_down))
    return x + s * g
```

```python
import sys, struct
NAME = "recurrent_scan__sliding_block_cached__geglu_ffn__decode"
HEADER = open("cdna_kernels/" + NAME + ".s.ref").read().split("; Override launch")[0]

def f32(x): return "0x%08x" % struct.unpack("<I", struct.pack("<f", x))[0]

QP, ML, OP, YP, FP = 0x1000, 0x50000, 0x60000, 0x80000, 0xA0000
WS_BYTES = 0x100000
L_Q, L_QF, L_MLF, L_OC, L_FC = 0x0, 0x100, 0x110, 0x120, 0x124
L_OS = 0x400
L_XN = 0x2400
L_FD = 0x3400
L_WO = 0x4000
LDS_BYTES = 0x8000
LOG2E = 1.4426950408889634
NSTAMP = 10

class G:
    def __init__(s, stamps=False, W=4, hid=31, cap=1 << 22):
        s.L = []; s.stamps = stamps; s.W = W; s.vm = []; s.lab = 0; s.hid = hid; s.cap = cap
    def A(s, t): s.L.append("    " + t)
    def label(s, n): s.L.append(n + ":")
    def new(s, p): s.lab += 1; return f"L_{p}{s.lab}"
    def nop(s, n):
        while n > 0:
            k = min(n, 16); s.A(f"s_nop {k-1}"); n -= k
    def vm_reset(s): s.vm = []
    def vm_issue(s, name, txt): s.A(txt); s.vm.append(name)
    def vm_wait(s, name):
        i = s.vm.index(name); n = len(s.vm) - 1 - i
        s.A(f"s_waitcnt vmcnt({n})")
    def stamp(s, k):
        if s.stamps: s.A(f"s_memrealtime s[{60+2*k}:{61+2*k}]")
    def stamp_write(s, ks):
        if not s.stamps: return
        s.A("s_waitcnt lgkmcnt(0)")
        s.A("s_mov_b64 exec, 1")
        s.A(f"s_mul_i32 s58, s2, {NSTAMP*8}")
        s.A("s_add_u32 s56, s26, s58"); s.A("s_addc_u32 s57, s27, 0")
        s.A("s_add_u32 s56, s56, 0x20000000"); s.A("s_addc_u32 s57, s57, 0")
        s.A("v_mov_b32 v1, 0")
        for k in ks:
            s.A(f"v_mov_b32 v2, s{60+2*k}"); s.A(f"v_mov_b32 v3, s{61+2*k}")
            s.A(f"global_store_dwordx2 v1, v[2:3], s[56:57] offset:{8*k}")
            s.A("s_waitcnt vmcnt(0)")
    def srd(s, d, base, off, size):
        if off is None:
            s.A(f"s_mov_b32 s{d}, s{base}"); s.A(f"s_mov_b32 s{d+1}, s{base+1}")
        else:
            s.A(f"s_add_u32 s{d}, s{base}, {off}"); s.A(f"s_addc_u32 s{d+1}, s{base+1}, 0")
        s.A(f"s_mov_b32 s{d+2}, {size}"); s.A(f"s_mov_b32 s{d+3}, 0x20000")
    def allreduce(s, op, v, t):
        for r in (8, 4, 2, 1):
            s.nop(2)
            s.A(f"v_{op}_f32_dpp v{v}, v{v}, v{v} row_ror:{r} row_mask:0xf bank_mask:0xf")
        for sw in ("16", "32"):
            s.A(f"v_mov_b32 v{t}, v{v}")
            s.nop(2)
            s.A(f"v_permlane{sw}_swap_b32 v{t}, v{v}")
            s.nop(1)
            s.A(f"v_{op}_f32 v{v}, v{v}, v{t}")
    def rbf(s, d, x):
        s.A(f"v_cvt_pk_bf16_f32 v{d}, v{x}, v{x}")
        s.A(f"v_and_b32 v{d}, 0xffff0000, v{d}")
    def masks(s, m, lane, t):
        s.A(f"v_and_b32 v{t}, 1, v{lane}")
        s.A(f"v_cmp_eq_u32 vcc, 1, v{t}")
        s.A(f"v_mov_b32 v{t}, 0xffff")
        s.A(f"v_mov_b32 v{t+1}, 0xffff0000")
        s.A(f"v_cndmask_b32 v{t}, v{t}, v{t+1}, vcc")
        s.A(f"v_bfe_u32 v{t+1}, v{lane}, 1, 2")
        for r in range(4):
            s.A(f"v_cmp_eq_u32 vcc, {r}, v{t+1}")
            s.nop(2)
            s.A(f"v_cndmask_b32 v{m+r}, 0, v{t}, vcc")
    def layernorm(s, x, u, mean, rinv, t):
        for i in range(4):
            s.A(f"v_lshlrev_b32 v{u+2*i}, 16, v{x+i}")
            s.A(f"v_and_b32 v{u+2*i+1}, 0xffff0000, v{x+i}")
        s.A(f"v_add_f32 v{mean}, v{u}, v{u+1}")
        for i in range(2, 8): s.A(f"v_add_f32 v{mean}, v{mean}, v{u+i}")
        s.allreduce("add", mean, t)
        s.A(f"v_mul_f32 v{mean}, {f32(1/512)}, v{mean}")
        s.A(f"v_sub_f32 v{t}, v{u}, v{mean}")
        s.A(f"v_mul_f32 v{rinv}, v{t}, v{t}")
        for i in range(1, 8):
            s.A(f"v_sub_f32 v{t}, v{u+i}, v{mean}")
            s.A(f"v_fmac_f32 v{rinv}, v{t}, v{t}")
        s.allreduce("add", rinv, t)
        s.A(f"v_mul_f32 v{rinv}, {f32(1/512)}, v{rinv}")
        s.rbf(mean, mean)
        s.rbf(rinv, rinv)
        s.A(f"v_add_f32 v{rinv}, {f32(1e-5)}, v{rinv}")
        s.rbf(rinv, rinv)
        s.A(f"v_sqrt_f32 v{rinv}, v{rinv}")
        s.nop(1)
        s.rbf(rinv, rinv)
        s.A(f"v_rcp_f32 v{rinv}, v{rinv}")
        s.nop(1)
    def poll(s, loads, tags, acc, code, premask=None):
        lp, ok = s.new("poll"), s.new("ok")
        s.A(f"s_mov_b32 s52, {s.cap}")
        s.label(lp)
        for t in loads: s.A(t)
        s.A("s_waitcnt vmcnt(0)")
        s.A(f"v_xor_b32 v{acc}, s46, v{tags[0]}")
        for t in tags[1:]:
            s.A(f"v_bitop3_b32 v{acc}, v{acc}, v{t}, s46 bitop3:0xf6")
        s.A(f"v_cmp_ne_u32 vcc, 0, v{acc}")
        s.A("s_cbranch_vccz " + ok)
        s.A("s_sub_u32 s52, s52, 1")
        s.A("s_cbranch_scc0 " + lp)
        s.A("s_branch L_fail")
        s.label(ok)
    def ldspoll(s, addr_v, off, dst, n, want):
        lp, ok = s.new("lp"), s.new("lok")
        s.A(f"s_mov_b32 s52, {s.cap}")
        s.label(lp)
        if n == 1: s.A(f"ds_read_b32 v{dst}, v{addr_v} offset:{off}")
        else: s.A(f"ds_read_b128 v[{dst}:{dst+3}], v{addr_v} offset:{off}")
        s.A("s_waitcnt lgkmcnt(0)")
        s.A(f"v_cmp_ne_u32 vcc, {want}, v{dst}")
        s.A("s_cbranch_vccz " + ok)
        s.A("s_sub_u32 s52, s52, 1")
        s.A("s_cbranch_scc0 " + lp)
        s.A("s_branch L_fail")
        s.label(ok)

def gen(stamps=False, W=4, ST="sc1", LD="sc1"):
    g = G(stamps, W); A = g.A
    g.L.append(HEADER.rstrip("\n"))
    g.L.append(f"; @launch grid=(256,1,1) block=(768,1,1) lds={LDS_BYTES}")
    g.L.append('.amdgcn_target "amdgcn-amd-amdhsa--gfx950"')
    g.L.append(".text")
    g.L.append(f".globl {NAME}_kernel")
    g.L.append(".p2align 8")
    g.L.append(f".type {NAME}_kernel,@function")
    g.L.append(f"{NAME}_kernel:")
    g.stamp(0)
    A("s_cmp_ge_u32 s2, 256")
    A("s_cbranch_scc1 L_end")
    A("s_load_dwordx16 s[4:19], s[0:1], 0")
    A("s_load_dwordx8 s[20:27], s[0:1], 64")
    A("v_lshrrev_b32 v1, 6, v0")
    A("s_lshr_b32 s44, s2, 3")
    A("s_and_b32 s45, s2, 7")
    A("v_readfirstlane_b32 s3, v1")
    A("v_and_b32 v2, 63, v0")
    A("s_lshl_b32 s47, s44, 23")
    A("s_lshl_b32 s48, s45, 17")
    A("s_add_u32 s47, s47, s48")
    A("s_add_u32 s47, s47, 0x700000")
    A("s_cmp_lt_u32 s3, 4")
    A("s_cbranch_scc1 L_aux")
    vK, vV, vS, vQ, vM, vD = 32, 96, 8, 4, 160, 164
    A("v_lshlrev_b32 v1, 4, v0")
    A("v_subrev_u32 v1, 4096, v1")
    A("s_waitcnt lgkmcnt(0)")
    g.srd(28, 6, "s47", 0x20000)
    g.srd(32, 8, "s47", 0x20000)
    A("s_load_dword s46, s[26:27], 0")
    g.vm_reset()
    def kv_issue(n):
        if n == 0 or n == 16:
            so = "0"; A("s_mov_b32 s47, 0")
        else:
            A("s_addk_i32 s47, 0x2000"); so = "s47"
        if n < 16: g.vm_issue(f"K{n}", f"buffer_load_dwordx4 v[{vK+4*n}:{vK+4*n+3}], v1, s[28:31], {so} offen nt")
        else: g.vm_issue(f"V{n-16}", f"buffer_load_dwordx4 v[{vV+4*(n-16)}:{vV+4*(n-16)+3}], v1, s[32:35], {so} offen nt")
    name = lambda n: f"K{n}" if n < 16 else f"V{n-16}"
    for n in range(W): kv_issue(n)
    g.srd(36, 26, None, WS_BYTES)
    A("s_lshl_b32 s48, s44, 17")
    A("s_lshl_b32 s49, s45, 7")
    A("s_add_u32 s48, s48, s49")
    g.srd(40, 12, "s48", 0x20000 - 0x380)
    for t in range(16): A(f"v_mov_b32 v{vS+t}, 0")
    g.masks(vM, 2, 24)
    A("s_sub_u32 s3, s3, 4")
    A("s_waitcnt lgkmcnt(0)")
    A("s_mul_i32 s46, s46, 0x9e3779b1")
    A("s_add_u32 s46, s46, 0x7f4a7c15")
    A("s_barrier")
    nxt = W
    while nxt < 16 + W:
        g.vm_wait(name(nxt - W)); kv_issue(nxt); nxt += 1
    g.stamp(1)
    for _ in range(2): kv_issue(nxt); nxt += 1
    A("v_mov_b32 v3, 0")
    g.ldspoll(3, L_QF, 24, 1, 1)
    A("v_and_b32 v24, 15, v2")
    A("v_lshlrev_b32 v24, 4, v24")
    A(f"ds_read_b128 v[{vQ}:{vQ+3}], v24 offset:{L_Q}")
    A("s_waitcnt lgkmcnt(0)")
    for r in range(4):
        for t in range(16):
            A(f"v_dot2c_f32_bf16 v{vS+t}, v{vK+4*t+r}, v{vQ+r}")
    g.nop(3)
    for t in range(8):
        A(f"v_add_f32_dpp v{vS+t}, v{vS+t}, v{vS+t} row_ror:8 row_mask:0xf bank_mask:0x3")
    for t in range(8):
        A(f"v_add_f32_dpp v{vS+t}, v{vS+t+8}, v{vS+t+8} row_ror:8 row_mask:0xf bank_mask:0xc")
    for t in range(4):
        A(f"v_add_f32_dpp v{vS+t}, v{vS+t}, v{vS+t} row_shl:4 row_mask:0xf bank_mask:0x5")
    for t in range(4):
        A(f"v_add_f32_dpp v{vS+t}, v{vS+t+4}, v{vS+t+4} row_shr:4 row_mask:0xf bank_mask:0xa")
    A("s_mov_b32 s50, 0xcccccccc"); A("s_mov_b32 s51, 0xcccccccc")
    for t in range(4):
        A(f"v_add_f32_dpp v{vS+t}, v{vS+t}, v{vS+t} quad_perm:[2,3,0,1] row_mask:0xf bank_mask:0xf")
    for t in range(2):
        A(f"v_cndmask_b32 v{vS+t}, v{vS+t}, v{vS+t+2}, s[50:51]")
    A("s_mov_b32 s50, 0xaaaaaaaa"); A("s_mov_b32 s51, 0xaaaaaaaa")
    for t in range(2):
        A(f"v_add_f32_dpp v{vS+t}, v{vS+t}, v{vS+t} quad_perm:[1,0,3,2] row_mask:0xf bank_mask:0xf")
    A(f"v_cndmask_b32 v{vS}, v{vS}, v{vS+1}, s[50:51]")
    g.vm_wait(name(nxt - W - 2)); kv_issue(nxt); nxt += 1
    g.rbf(vS, vS)
    A(f"v_mul_f32 v{vS}, {f32(128 ** -0.5)}, v{vS}")
    g.rbf(vS, vS)
    A(f"v_mov_b32 v24, v{vS}")
    g.allreduce("max", 24, 25)
    A(f"v_sub_f32 v{vS}, v{vS}, v24")
    A(f"v_mul_f32 v{vS}, {f32(LOG2E)}, v{vS}")
    A(f"v_exp_f32 v{vS}, v{vS}")
    g.nop(1)
    A(f"v_mov_b32 v26, v{vS}")
    A(f"v_cvt_pk_bf16_f32 v28, v{vS}, v{vS}")
    g.allreduce("add", 26, 25)
    A("v_mov_b32 v25, s46"); A("v_mov_b32 v27, s46")
    A("s_lshl_b32 s48, s2, 3"); A("s_add_u32 s48, s48, s3"); A("s_lshl_b32 s48, s48, 4")
    A(f"s_add_u32 s48, s48, {ML}")
    A("s_mov_b64 exec, 1")
    g.vm_issue("ml", f"buffer_store_dwordx4 v[24:27], v3, s[36:39], s48 offen {ST}")
    A("s_mov_b64 exec, -1")
    A("v_lshrrev_b32 v29, 3, v2"); A("v_lshlrev_b32 v29, 10, v29")
    A("v_and_b32 v30, 7, v2"); A("v_lshl_add_u32 v29, v30, 4, v29")
    A("s_lshl_b32 s49, s3, 14")
    A("s_lshl_b32 s53, s3, 11"); A(f"s_add_u32 s53, s53, {L_WO}")
    vA = vK
    def next_issue():
        nonlocal nxt
        if nxt < 32: kv_issue(nxt)
        elif nxt < 34:
            A("s_mov_b32 m0, s53")
            g.nop(1)
            g.vm_issue(f"WO{nxt-32}", f"buffer_load_dwordx4 v29, s[40:43], s49 offen nt lds")
            if nxt == 32:
                A("s_addk_i32 s49, 0x2000"); A("s_addk_i32 s53, 0x400")
        nxt += 1
    for t in range(16):
        a = vA + 4 * (t & 1)
        for r in range(4):
            A(f"v_and_b32_dpp v{a+r}, v28, v{vM+r} row_newbcast:{t} row_mask:0xf bank_mask:0xf")
        if t == 13:
            g.ldspoll(3, L_MLF, 8, 4, 1)
            A("v_sub_f32 v24, v24, v9")
            A(f"v_mul_f32 v24, {f32(LOG2E)}, v24")
            A("v_exp_f32 v24, v24")
            A("s_lshl_b32 s48, s3, 10")
            A("v_lshlrev_b32 v11, 4, v2")
            A("v_mul_f32 v24, v24, v10")
            A("v_add_u32 v11, s48, v11")
            A("v_mov_b32 v12, 1")
        g.vm_wait(f"V{t}")
        while nxt <= 16 + t + W and nxt < 34: next_issue()
        g.nop(1)
        c = "0" if t == 0 else f"v[{vD}:{vD+3}]"
        A(f"v_mfma_f32_16x16x32_bf16 v[{vD}:{vD+3}], v[{a}:{a+3}], v[{vV+4*t}:{vV+4*t+3}], {c}")
    g.stamp(4)
    g.nop(8)
    for r in range(4): A(f"v_mul_f32 v{vD+r}, v24, v{vD+r}")
    A(f"ds_write_b128 v11, v[{vD}:{vD+3}] offset:{L_OS}")
    A("s_mov_b64 exec, 1")
    A(f"ds_add_rtn_u32 v12, v3, v12 offset:{L_OC}")
    A("s_mov_b64 exec, -1")
    A("v_bfe_u32 v13, v2, 3, 1"); A("v_lshlrev_b32 v13, 4, v13")
    A("v_bfe_u32 v14, v2, 4, 1"); A("v_add_u32 v13, v13, v14")
    A("v_and_b32 v14, 7, v2"); A("v_lshl_add_u32 v13, v14, 1, v13")
    A("v_lshlrev_b32 v13, 4, v13")
    A("s_waitcnt lgkmcnt(0)")
    A("v_readfirstlane_b32 s48, v12")
    A("s_cmp_lg_u32 s48, 7")
    A("s_cbranch_scc1 L_main_done")
    for w in range(8):
        A(f"ds_read_b128 v[{vK+4*w}:{vK+4*w+3}], v13 offset:{L_OS + 1024*w}")
    A("v_lshlrev_b32 v14, 4, v2")
    A("s_lshl_b32 s48, s2, 9"); A(f"s_add_u32 s48, s48, {OP}")
    for lvl, step in enumerate((1, 2, 4)):
        for w in range(0, 8, 2 * step):
            if lvl == 0: A(f"s_waitcnt lgkmcnt({6 - w})")
            for hf in (0, 2):
                a_, b_ = vK + 4 * w + hf, vK + 4 * (w + step) + hf
                A(f"v_pk_add_f32 v[{a_}:{a_+1}], v[{a_}:{a_+1}], v[{b_}:{b_+1}]")
    A(f"v_cvt_pk_bf16_f32 v24, v{vK}, v{vK+1}")
    A(f"v_cvt_pk_bf16_f32 v26, v{vK+2}, v{vK+3}")
    A("s_mov_b32 exec_hi, 0")
    A(f"buffer_store_dwordx4 v[24:27], v14, s[36:39], s48 offen {ST}")
    g.stamp(5)
    g.stamp_write([5])
    g.label("L_main_done")
    if stamps:
        A("s_cmp_lg_u32 s3, 0"); A("s_cbranch_scc1 L_main_end")
        g.stamp_write([0, 1, 4])
        g.label("L_main_end")
    A("s_waitcnt vmcnt(0)")
    A("s_endpgm")
    g.label("L_aux")
    A("s_mul_i32 s48, s45, 43"); A("s_add_u32 s48, s48, 4"); A("s_add_u32 s49, s48, 43")
    A("s_lshr_b32 s48, s48, 3"); A("s_lshr_b32 s49, s49, 3")
    A("s_add_u32 s54, s48, s44")
    A("s_cmp_lt_u32 s54, s49")
    A("s_cselect_b32 s55, 1, 0")
    A("v_lshlrev_b32 v1, 4, v2")
    A("s_waitcnt lgkmcnt(0)")
    A("s_load_dword s46, s[26:27], 0")
    g.srd(36, 26, None, WS_BYTES)
    A("s_cmp_lg_u32 s3, 0")
    A("s_cbranch_scc1 L_aux123")
    vW = 32
    A("global_load_dwordx4 v[4:7], v1, s[4:5]")
    A("v_and_b32 v8, 15, v2"); A("v_lshrrev_b32 v9, 4, v2")
    A("v_lshl_add_u32 v10, v8, 2, v9"); A("s_lshl_b32 s48, s45, 6"); A("v_add_lshl_u32 v10, v10, s48, 1")
    A("global_load_ushort v11, v10, s[4:5]")
    A("s_lshl_b32 s48, s45, 19"); A("s_lshl_b32 s49, s44, 8"); A("s_add_u32 s48, s48, s49")
    g.srd(28, 10, "s48", 0x80000 - 0x1f00)
    A("v_lshlrev_b32 v10, 13, v9"); A("v_lshl_add_u32 v10, v8, 4, v10")
    A("s_mov_b32 s47, 0")
    for t in range(16):
        A(f"buffer_load_dwordx4 v[{vW+4*t}:{vW+4*t+3}], v10, s[28:31], s47 offen nt")
        if t < 15: A("s_add_u32 s47, s47, 0x8000")
    A("v_mov_b32 v3, 0")
    A("v_mov_b32 v12, 0"); A("v_mov_b32 v13, 0"); A("v_mov_b32 v14, 0"); A("v_mov_b32 v15, 0")
    A(f"ds_write_b128 v3, v[12:15] offset:{L_QF}")
    A(f"ds_write_b128 v3, v[12:15] offset:{L_MLF}")
    A(f"ds_write_b128 v3, v[12:15] offset:{L_OC}")
    A("s_waitcnt lgkmcnt(0)")
    A("s_barrier")
    A("s_mul_i32 s46, s46, 0x9e3779b1"); A("s_add_u32 s46, s46, 0x7f4a7c15")
    g.masks(160, 2, 24)
    A("s_waitcnt vmcnt(16)")
    g.layernorm(4, 12, 20, 21, 24)
    A("v_lshlrev_b32 v11, 16, v11")
    A("v_sub_f32 v11, v11, v20")
    g.rbf(11, 11)
    A("v_mul_f32 v11, v11, v21")
    A("v_cvt_pk_bf16_f32 v28, v11, v11")
    g.nop(2)
    for t in range(16):
        a = 12 + 4 * (t & 1)
        for r in range(4):
            A(f"v_and_b32_dpp v{a+r}, v28, v{160+r} row_newbcast:{t} row_mask:0xf bank_mask:0xf")
        A(f"s_waitcnt vmcnt({15-t})")
        g.nop(1)
        c = "0" if t == 0 else "v[164:167]"
        A(f"v_mfma_f32_16x16x32_bf16 v[164:167], v[{a}:{a+3}], v[{vW+4*t}:{vW+4*t+3}], {c}")
    A("s_mov_b32 s50, 0"); A("s_mov_b32 s51, -1")
    A("v_mov_b32 v25, s46"); A("v_mov_b32 v27, s46")
    A("s_lshl_b32 s48, s2, 10"); A(f"s_add_u32 s48, s48, {QP}")
    g.nop(4)
    A("v_cndmask_b32 v24, v164, v166, s[50:51]")
    A("v_cndmask_b32 v26, v165, v167, s[50:51]")
    A(f"buffer_store_dwordx4 v[24:27], v1, s[36:39], s48 offen {ST}")
    A("s_lshl_b32 s48, s44, 13"); A(f"s_add_u32 s48, s48, {QP}"); A("s_add_u32 s49, s48, 0x1000")
    loads = [f"buffer_load_dwordx4 v[{vW+4*p}:{vW+4*p+3}], v1, s[36:39], {'s48' if p < 4 else 's49'} offen offset:{(p&3)*1024} {LD}" for p in range(8)]
    g.poll(loads, [vW + 4 * p + k for p in range(8) for k in (1, 3)], 24, 1)
    for p in range(1, 8):
        A(f"v_add_f32 v{vW}, v{vW}, v{vW+4*p}")
        A(f"v_add_f32 v{vW+2}, v{vW+2}, v{vW+4*p+2}")
    A("v_bfe_u32 v12, v2, 4, 1"); A("v_lshrrev_b32 v13, 5, v2")
    A("v_lshl_add_u32 v12, v12, 1, v13"); A("v_lshl_add_u32 v12, v8, 2, v12"); A("v_lshlrev_b32 v12, 2, v12")
    A(f"v_cvt_pk_bf16_f32 v13, v{vW}, v{vW+2}")
    A("v_mov_b32 v14, 1")
    A(f"ds_write_b32 v12, v13 offset:{L_Q}")
    A(f"ds_write_b32 v3, v14 offset:{L_QF}")
    g.stamp(2)
    A("s_lshl_b32 s48, s44, 10"); A(f"s_add_u32 s48, s48, {ML}")
    g.poll([f"buffer_load_dwordx4 v[{vW}:{vW+3}], v1, s[36:39], s48 offen {LD}"], [vW + 1, vW + 3], 24, 2)
    A(f"v_mov_b32 v13, v{vW}")
    g.allreduce("max", 13, 24)
    A(f"v_sub_f32 v14, v{vW}, v13")
    A(f"v_mul_f32 v14, {f32(LOG2E)}, v14")
    A("v_exp_f32 v14, v14")
    g.nop(1)
    A(f"v_mul_f32 v14, v14, v{vW+2}")
    g.allreduce("add", 14, 24)
    A("v_rcp_f32 v14, v14")
    A("v_mov_b32 v12, 1")
    g.nop(1)
    A(f"ds_write2_b32 v3, v13, v14 offset0:{(L_MLF+4)//4} offset1:{(L_MLF+8)//4}")
    A(f"ds_write_b32 v3, v12 offset:{L_MLF}")
    g.stamp(3)
    A("s_branch L_tail")
    g.label("L_aux123")
    A("s_cmp_eq_u32 s55, 0")
    A("s_cbranch_scc1 L_aux_noffn")
    A("s_cmp_eq_u32 s3, 3")
    A("s_cbranch_scc1 L_down")
    A("global_load_dwordx4 v[4:7], v1, s[4:5]")
    A("s_sub_u32 s53, s3, 1")
    A("v_bfe_u32 v8, v2, 2, 1"); A("v_cmp_eq_u32 vcc, 1, v8")
    A("v_mov_b32 v8, s16"); A("v_mov_b32 v9, s17"); A("v_mov_b32 v10, s18"); A("v_mov_b32 v11, s19")
    A("v_cndmask_b32 v8, v8, v10, vcc"); A("v_cndmask_b32 v9, v9, v11, vcc")
    A("v_lshrrev_b32 v12, 3, v2"); A(f"v_mul_u32_u24 v10, {4*2752}, v12")
    A("v_and_b32 v11, 3, v2"); A("v_lshl_add_u32 v10, v11, 4, v10")
    A(f"s_mul_i32 s48, s53, {256*2752}"); A("s_lshl_b32 s49, s54, 6"); A("s_add_u32 s48, s48, s49")
    A("v_add_u32 v10, s48, v10"); A("v_mov_b32 v11, 0")
    A("v_lshl_add_u64 v[8:9], v[8:9], 0, v[10:11]")
    A(f"s_mov_b32 s48, {2*2752}"); A("s_mov_b32 s49, 0")
    A(f"s_mov_b32 s50, {30*2752}"); A("s_mov_b32 s51, 0")
    NB = 16; FW = 8
    g.vm_reset(); g.vm.append("x")
    def gu_issue(n):
        tt = n & 3
        b = vW + 4 * (n % NB)
        g.vm_issue(f"G{n}", f"global_load_dwordx4 v[{b}:{b+3}], v[8:9], off offset:{(tt&1)*2752} nt")
        if tt == 1: A("v_lshl_add_u64 v[8:9], v[8:9], 0, s[48:49]")
        if tt == 3 and n < 31: A("v_lshl_add_u64 v[8:9], v[8:9], 0, s[50:51]")
    for n in range(FW): gu_issue(n)
    A("s_barrier")
    g.masks(160, 2, 24)
    g.vm_wait("x")
    g.layernorm(4, 16, 14, 15, 24)
    for i in range(8):
        A(f"v_sub_f32 v{16+i}, v{16+i}, v14")
        g.rbf(16 + i, 16 + i)
        A(f"v_mul_f32 v{16+i}, v{16+i}, v15")
        A(f"v_cvt_pk_bf16_f32 v{16+i}, v{16+i}, v{16+i}")
    A("s_lshl_b32 s47, s53, 11"); A(f"s_add_u32 s47, s47, {L_XN}")
    A("v_lshl_add_u32 v13, v2, 5, s47")
    A("ds_write_b128 v13, v[16:19]"); A("ds_write_b128 v13, v[20:23] offset:16")
    A("s_mul_i32 s47, s53, 3072"); A(f"s_add_u32 s47, s47, {L_XN}")
    A("v_lshl_add_u32 v13, v12, 4, s47")
    for T in range(8):
        A(f"ds_read_b128 v[{100+4*T}:{103+4*T}], v13 offset:{128*T}")
    A("s_waitcnt lgkmcnt(0)")
    nx = FW
    for n in range(32):
        a = 16 + 4 * (n & 1)
        for r in range(4): A(f"v_and_b32 v{a+r}, v{100+n}, v{160+r}")
        g.vm_wait(f"G{n}")
        g.nop(1)
        b = vW + 4 * (n % NB)
        c = "0" if n == 0 else "v[164:167]"
        A(f"v_mfma_f32_16x16x32_bf16 v[164:167], v[{a}:{a+3}], v[{b}:{b+3}], {c}")
        if nx < 32: gu_issue(nx); nx += 1
    A("s_lshl_b32 s47, s53, 10"); A(f"s_add_u32 s47, s47, {L_FD}")
    A("v_add_u32 v13, s47, v1"); A("v_mov_b32 v3, 0"); A("v_mov_b32 v12, 1")
    g.nop(4)
    A("ds_write_b128 v13, v[164:167]")
    A("s_mov_b64 exec, 1")
    A(f"ds_add_u32 v3, v12 offset:{L_FC}")
    A("s_mov_b64 exec, -1")
    A("s_branch L_tail0")
    g.label("L_down")
    A("s_lshl_b32 s48, s54, 15")
    g.srd(28, 20, "s48", 0x8000)
    A("v_lshrrev_b32 v9, 4, v2"); A("v_and_b32 v8, 15, v2")
    A("v_lshlrev_b32 v10, 10, v9"); A("v_lshl_add_u32 v10, v8, 4, v10")
    g.vm_reset()
    def dn_issue(n):
        tp, q = n >> 2, n & 3
        if q == 0: A(f"s_movk_i32 s47, {tp*4096}")
        g.vm_issue(f"D{n}", f"buffer_load_dwordx4 v[{vW+4*n}:{vW+4*n+3}], v10, s[28:31], s47 offen offset:{q*256} nt")
    DW = 4
    for n in range(DW): dn_issue(n)
    A("s_barrier")
    g.masks(160, 2, 24)
    for n in range(DW, 32):
        g.vm_wait(f"D{n-DW}"); dn_issue(n)
    A("v_and_b32 v11, 7, v8"); A("v_lshl_add_u32 v11, v11, 2, v9")
    A("v_bfe_u32 v12, v11, 2, 1"); A("v_lshlrev_b32 v12, 4, v12")
    A("v_lshrrev_b32 v13, 3, v11"); A("v_add_u32 v12, v12, v13")
    A("v_and_b32 v13, 3, v11"); A("v_lshl_add_u32 v12, v12, 2, v13"); A("v_lshlrev_b32 v12, 2, v12")
    A("v_mov_b32 v3, 0")
    g.ldspoll(3, L_FC, 24, 1, 2)
    offs = [0, 640, 1024, 1664, 64, 704, 1088, 1728]
    for i, o in enumerate(offs): A(f"ds_read_b32 v{16+i}, v12 offset:{L_FD+o}")
    A("s_waitcnt lgkmcnt(0)")
    A("v_add_f32 v16, v16, v17"); A("v_add_f32 v18, v18, v19"); A("v_add_f32 v20, v20, v21"); A("v_add_f32 v22, v22, v23")
    A("v_add_f32 v16, v16, v18"); A("v_add_f32 v20, v20, v22")
    g.rbf(16, 16); g.rbf(20, 20)
    A("v_mul_f32 v17, v16, v16")
    A(f"v_mul_f32 v17, {f32(0.044715)}, v17")
    A("v_fma_f32 v17, v17, v16, v16")
    A(f"v_mul_f32 v17, {f32(-2*0.7978845608028654*LOG2E)}, v17")
    A("v_exp_f32 v17, v17"); g.nop(1)
    A("v_add_f32 v17, 1.0, v17")
    A("v_rcp_f32 v17, v17"); g.nop(1)
    A("v_mul_f32 v16, v16, v17")
    g.rbf(16, 16)
    A("v_mul_f32 v16, v16, v20")
    A("v_cvt_pk_bf16_f32 v28, v16, v16")
    A("s_waitcnt vmcnt(0) lgkmcnt(0)")
    A("s_mul_i32 s46, s46, 0x9e3779b1"); A("s_add_u32 s46, s46, 0x7f4a7c15")
    vDq = 4
    for tp in range(8):
        a = 20 + 4 * (tp & 1)
        for r in range(4):
            A(f"v_and_b32_dpp v{a+r}, v28, v{160+r} row_newbcast:{tp} row_mask:0xf bank_mask:0xf")
        g.nop(2)
        for q in range(4):
            c = "0" if tp == 0 else f"v[{vDq+4*q}:{vDq+4*q+3}]"
            b = vW + 4 * (4 * tp + q)
            A(f"v_mfma_f32_16x16x32_bf16 v[{vDq+4*q}:{vDq+4*q+3}], v[{a}:{a+3}], v[{b}:{b+3}], {c}")
    A("v_bfe_u32 v29, v2, 1, 3"); A(f"v_mul_u32_u24 v29, {48*128}, v29")
    A("v_and_b32 v30, 1, v2"); A("v_lshl_add_u32 v29, v30, 6, v29")
    A("v_bfe_u32 v30, v2, 4, 1"); A("v_lshl_add_u32 v29, v30, 5, v29")
    A("v_lshrrev_b32 v30, 5, v2"); A("v_lshl_add_u32 v29, v30, 4, v29")
    A("s_lshl_b32 s48, s54, 7"); A(f"s_add_u32 s48, s48, {FP}")
    A("s_mov_b32 s50, 0"); A("s_mov_b32 s51, -1")
    for q in range(4):
        o = 32 + 4 * q
        A(f"v_cndmask_b32 v{o}, v{vDq+4*q}, v{vDq+4*q+2}, s[50:51]")
        A(f"v_cndmask_b32 v{o+2}, v{vDq+4*q+1}, v{vDq+4*q+3}, s[50:51]")
        A(f"v_mov_b32 v{o+1}, s46"); A(f"v_mov_b32 v{o+3}, s46")
        A(f"buffer_store_dwordx4 v[{o}:{o+3}], v29, s[36:39], s48 offen {ST}")
        if q < 3: A(f"s_add_u32 s48, s48, {8*48*128}")
    A("s_branch L_tail")
    g.label("L_aux_noffn")
    A("s_barrier")
    g.label("L_tail0")
    A("s_waitcnt lgkmcnt(0)")
    A("s_mul_i32 s46, s46, 0x9e3779b1"); A("s_add_u32 s46, s46, 0x7f4a7c15")
    g.label("L_tail")
    A("s_lshl_b32 s53, s45, 2"); A("s_add_u32 s53, s53, s3")
    A("v_and_b32 v8, 7, v2"); A("s_lshl_b32 s48, s53, 5"); A("v_lshl_add_u32 v8, v8, 2, s48")
    A(f"s_cmp_lg_u32 s44, {g.hid}")
    A("s_cbranch_scc1 L_t1")
    A("global_load_dword v9, v8, s[4:5]")
    A(f"s_mul_i32 s48, s53, {48*128}"); A(f"s_add_u32 s48, s48, {FP}"); A("s_add_u32 s49, s48, 0x1000")
    A("v_cmp_gt_u32 vcc, 24, v2"); A("v_and_b32 v10, 7, v2"); A("v_lshlrev_b32 v10, 4, v10")
    A("v_cndmask_b32 v10, v10, v1, vcc")
    A("s_mov_b64 s[50:51], vcc")
    loads = [f"buffer_load_dwordx4 v[{vW+4*p}:{vW+4*p+3}], {'v10' if p == 5 else 'v1'}, s[36:39], {'s48' if p < 4 else 's49'} offen offset:{(p&3)*1024} {LD}" for p in range(6)]
    g.poll(loads, [vW + 4 * p + k for p in range(6) for k in (1, 3)], 24, 3)
    A(f"v_cndmask_b32 v{vW+20}, 0, v{vW+20}, s[50:51]")
    A(f"v_cndmask_b32 v{vW+22}, 0, v{vW+22}, s[50:51]")
    for p in range(1, 6):
        A(f"v_add_f32 v{vW}, v{vW}, v{vW+4*p}")
        A(f"v_add_f32 v{vW+2}, v{vW+2}, v{vW+4*p+2}")
    def red8(a, b, t):
        g.nop(2)
        for v in (a, b): A(f"v_add_f32_dpp v{v}, v{v}, v{v} row_ror:8 row_mask:0xf bank_mask:0xf")
        for sw in ("16", "32"):
            A(f"v_mov_b32 v{t}, v{a}"); A(f"v_mov_b32 v{t+1}, v{b}")
            g.nop(2)
            A(f"v_permlane{sw}_swap_b32 v{t}, v{a}"); A(f"v_permlane{sw}_swap_b32 v{t+1}, v{b}")
            g.nop(1)
            A(f"v_add_f32 v{a}, v{a}, v{t}"); A(f"v_add_f32 v{b}, v{b}, v{t+1}")
    red8(vW, vW + 2, 24)
    for i, v in enumerate((vW, vW + 2)):
        d = 100 + i
        g.rbf(d, v)
        A(f"v_mul_f32 v24, {f32(-LOG2E)}, v{d}")
        A("v_exp_f32 v24, v24"); g.nop(1)
        A("v_add_f32 v24, 1.0, v24")
        A("v_rcp_f32 v24, v24"); g.nop(1)
        A(f"v_mul_f32 v{d}, v{d}, v24")
        g.rbf(d, d)
    A("v_lshlrev_b32 v102, 16, v9"); A("v_and_b32 v103, 0xffff0000, v9")
    g.label("L_t1")
    A("v_and_b32 v10, 7, v2"); A("v_lshlrev_b32 v10, 9, v10")
    A("v_bfe_u32 v11, v2, 3, 1"); A("v_lshl_add_u32 v10, v11, 6, v10")
    A("v_lshrrev_b32 v11, 4, v2"); A("v_lshl_add_u32 v10, v11, 4, v10")
    A("s_lshl_b32 s48, s44, 12"); A(f"s_add_u32 s48, s48, {OP}")
    A("v_bfe_u32 v12, v2, 2, 2"); A("v_lshl_add_u32 v12, v11, 4, v12"); A("v_lshlrev_b32 v12, 7, v12")
    A("v_and_b32 v13, 3, v2"); A("v_lshl_add_u32 v12, v13, 3, v12")
    A("s_lshl_b32 s49, s3, 5"); A(f"s_add_u32 s49, s49, {L_WO}"); A("v_add_u32 v12, s49, v12")
    loads = [f"buffer_load_dwordx4 v[{vW+4*k}:{vW+4*k+3}], v10, s[36:39], s48 offen offset:{k*128} {LD}" for k in range(4)]
    g.poll(loads, [vW + 4 * k + z for k in range(4) for z in (1, 3)], 24, 4)
    g.stamp(6)
    A("s_barrier")
    vB = 64
    for hh in range(2):
        for f in range(2):
            for z in range(2):
                b = vB + 8 * hh + 4 * f + 2 * z
                A(f"ds_read_b64_tr_b16 v[{b}:{b+1}], v12 offset:{(64*hh + 8*f + 4*z)*128}")
    for f in range(2):
        a = vW + 8 * f
        A(f"v_mov_b32 v{a+1}, v{a+2}"); A(f"v_mov_b32 v{a+2}, v{a+4}"); A(f"v_mov_b32 v{a+3}, v{a+6}")
    A("s_waitcnt lgkmcnt(0)")
    g.nop(1)
    for f in range(2):
        for hh in range(2):
            d = 16 + 4 * hh; a = vW + 8 * f; b = vB + 8 * hh + 4 * f
            c = "0" if f == 0 else f"v[{d}:{d+3}]"
            A(f"v_mfma_f32_16x16x32_bf16 v[{d}:{d+3}], v[{a}:{a+3}], v[{b}:{b+3}], {c}")
    A("s_mov_b32 s50, 0"); A("s_mov_b32 s51, -1")
    A("s_lshl_b32 s48, s53, 5"); A("s_add_u32 s48, s48, s44"); A("s_lshl_b32 s48, s48, 7"); A(f"s_add_u32 s48, s48, {YP}")
    A("v_lshlrev_b32 v10, 3, v2"); A("v_mov_b32 v25, s46")
    g.nop(1)
    for r in range(4): A(f"v_cndmask_b32 v{16+r}, v{16+r}, v{20+r}, s[50:51]")
    A("v_add_f32 v16, v16, v17"); A("v_add_f32 v18, v18, v19"); A("v_add_f32 v24, v16, v18")
    for sw in ("16", "32"):
        A("v_mov_b32 v16, v24"); g.nop(2)
        A(f"v_permlane{sw}_swap_b32 v16, v24"); g.nop(1)
        A("v_add_f32 v24, v24, v16")
    A("s_mov_b64 exec, 0xffff")
    A(f"buffer_store_dwordx2 v[24:25], v10, s[36:39], s48 offen {ST}")
    A("s_mov_b64 exec, -1")
    g.stamp(7); g.stamp(8)
    A(f"s_cmp_lg_u32 s44, {g.hid}")
    A("s_cbranch_scc1 L_aux_done")
    A("s_lshl_b32 s48, s53, 12"); A(f"s_add_u32 s48, s48, {YP}")
    loads = [f"buffer_load_dwordx4 v[{vW+4*k}:{vW+4*k+3}], v1, s[36:39], s48 offen offset:{k*1024} {LD}" for k in range(4)]
    g.poll(loads, [vW + 4 * k + z for k in range(4) for z in (1, 3)], 24, 5)
    A(f"v_add_f32 v{vW}, v{vW}, v{vW+4}"); A(f"v_add_f32 v{vW+2}, v{vW+2}, v{vW+6}")
    A(f"v_add_f32 v{vW+8}, v{vW+8}, v{vW+12}"); A(f"v_add_f32 v{vW+10}, v{vW+10}, v{vW+14}")
    A(f"v_add_f32 v{vW}, v{vW}, v{vW+8}"); A(f"v_add_f32 v{vW+2}, v{vW+2}, v{vW+10}")
    red8(vW, vW + 2, 24)
    for i, v in enumerate((vW, vW + 2)):
        g.rbf(v, v)
        A(f"v_mul_f32 v{v}, v{v}, v{100+i}")
        g.rbf(v, v)
        A(f"v_add_f32 v{v}, v{v}, v{102+i}")
    A(f"v_cvt_pk_bf16_f32 v24, v{vW}, v{vW+2}")
    A("s_mov_b64 exec, 0xff")
    A("global_store_dword v8, v24, s[22:23]")
    A("s_cmp_lg_u32 s53, 0")
    A("s_cbranch_scc1 L_fin_done")
    A("v_mov_b32 v3, 0"); A("v_mov_b32 v24, s46")
    A("s_mov_b64 exec, 1")
    A("global_store_dword v3, v24, s[26:27]")
    g.label("L_fin_done")
    g.stamp(8)
    g.label("L_aux_done")
    if stamps:
        A("s_cmp_lg_u32 s3, 0"); A("s_cbranch_scc1 L_end")
        g.stamp(9)
        g.stamp_write([2, 3, 6, 7, 8, 9])
    g.label("L_fail")
    g.label("L_end")
    A("s_endpgm")
    g.L += ['.section .rodata,"a"', ".p2align 6", f".amdhsa_kernel {NAME}_kernel",
            "  .amdhsa_next_free_vgpr 168", "  .amdhsa_next_free_sgpr 96", "  .amdhsa_accum_offset 168",
            "  .amdhsa_group_segment_fixed_size 0", "  .amdhsa_kernarg_size 96", "  .amdhsa_user_sgpr_count 2",
            "  .amdhsa_user_sgpr_kernarg_segment_ptr 1", "  .amdhsa_system_sgpr_workgroup_id_x 1", ".end_amdhsa_kernel"]
    return "\n".join(g.L) + "\n"

if __name__ == "__main__":
    open("v1.s", "w").write(gen(False))
    open("v1_st.s", "w").write(gen(True))
```

```python
import sys, struct
NAME = "recurrent_scan__sliding_block_cached__geglu_ffn__decode"
HEADER = open("cdna_kernels/" + NAME + ".s.ref").read().split("; Override launch")[0]

def f32(x): return "0x%08x" % struct.unpack("<I", struct.pack("<f", x))[0]

QP, ML, OP, YP, FP = 0x1000, 0x50000, 0x60000, 0x80000, 0xA0000
WS_BYTES = 0x100000
L_Q, L_QF, L_MLF, L_OC, L_FC = 0x0, 0x100, 0x110, 0x120, 0x124
L_OS = 0x400
L_XN = 0x2400
L_FD = 0x3400
L_WO = 0x4000
LDS_BYTES = 0x8000
LOG2E = 1.4426950408889634
NSTAMP = 10

class G:
    def __init__(s, stamps=False, W=4, hid=31, cap=1 << 22):
        s.L = []; s.stamps = stamps; s.W = W; s.vm = []; s.lab = 0; s.hid = hid; s.cap = cap
    def A(s, t): s.L.append("    " + t)
    def label(s, n): s.L.append(n + ":")
    def new(s, p): s.lab += 1; return f"L_{p}{s.lab}"
    def nop(s, n):
        while n > 0:
            k = min(n, 16); s.A(f"s_nop {k-1}"); n -= k
    def vm_reset(s): s.vm = []
    def vm_issue(s, name, txt): s.A(txt); s.vm.append(name)
    def vm_wait(s, name):
        i = s.vm.index(name); n = len(s.vm) - 1 - i
        s.A(f"s_waitcnt vmcnt({n})")
    def stamp(s, k):
        if s.stamps: s.A(f"s_memrealtime s[{60+2*k}:{61+2*k}]")
    def stamp_write(s, ks):
        if not s.stamps: return
        s.A("s_waitcnt lgkmcnt(0)")
        s.A("s_mov_b64 exec, 1")
        s.A(f"s_mul_i32 s58, s2, {globals()[chr(78)+chr(83)+chr(84)+chr(65)+chr(77)+chr(80)]*8}")
        s.A("s_add_u32 s56, s26, s58"); s.A("s_addc_u32 s57, s27, 0")
        s.A("s_add_u32 s56, s56, 0x20000000"); s.A("s_addc_u32 s57, s57, 0")
        s.A("v_mov_b32 v1, 0")
        for k in ks:
            s.A(f"v_mov_b32 v2, s{60+2*k}"); s.A(f"v_mov_b32 v3, s{61+2*k}")
            s.A(f"global_store_dwordx2 v1, v[2:3], s[56:57] offset:{8*k}")
            s.A("s_waitcnt vmcnt(0)")
    def srd(s, d, base, off, size):
        if off is None:
            s.A(f"s_mov_b32 s{d}, s{base}"); s.A(f"s_mov_b32 s{d+1}, s{base+1}")
        else:
            s.A(f"s_add_u32 s{d}, s{base}, {off}"); s.A(f"s_addc_u32 s{d+1}, s{base+1}, 0")
        s.A(f"s_mov_b32 s{d+2}, {size}"); s.A(f"s_mov_b32 s{d+3}, 0x20000")
    def allreduce(s, op, v, t):
        for r in (8, 4, 2, 1):
            s.nop(2)
            s.A(f"v_{op}_f32_dpp v{v}, v{v}, v{v} row_ror:{r} row_mask:0xf bank_mask:0xf")
        for sw in ("16", "32"):
            s.A(f"v_mov_b32 v{t}, v{v}")
            s.nop(2)
            s.A(f"v_permlane{sw}_swap_b32 v{t}, v{v}")
            s.nop(1)
            s.A(f"v_{op}_f32 v{v}, v{v}, v{t}")
    def rbf(s, d, x):
        s.A(f"v_cvt_pk_bf16_f32 v{d}, v{x}, v{x}")
        s.A(f"v_and_b32 v{d}, 0xffff0000, v{d}")
    def masks(s, m, lane, t):
        s.A(f"v_and_b32 v{t}, 1, v{lane}")
        s.A(f"v_cmp_eq_u32 vcc, 1, v{t}")
        s.A(f"v_mov_b32 v{t}, 0xffff")
        s.A(f"v_mov_b32 v{t+1}, 0xffff0000")
        s.A(f"v_cndmask_b32 v{t}, v{t}, v{t+1}, vcc")
        s.A(f"v_bfe_u32 v{t+1}, v{lane}, 1, 2")
        for r in range(4):
            s.A(f"v_cmp_eq_u32 vcc, {r}, v{t+1}")
            s.nop(2)
            s.A(f"v_cndmask_b32 v{m+r}, 0, v{t}, vcc")
    def layernorm(s, x, u, mean, rinv, t):
        for i in range(4):
            s.A(f"v_lshlrev_b32 v{u+2*i}, 16, v{x+i}")
            s.A(f"v_and_b32 v{u+2*i+1}, 0xffff0000, v{x+i}")
        s.A(f"v_add_f32 v{mean}, v{u}, v{u+1}")
        for i in range(2, 8): s.A(f"v_add_f32 v{mean}, v{mean}, v{u+i}")
        s.allreduce("add", mean, t)
        s.A(f"v_mul_f32 v{mean}, {f32(1/512)}, v{mean}")
        s.A(f"v_sub_f32 v{t}, v{u}, v{mean}")
        s.A(f"v_mul_f32 v{rinv}, v{t}, v{t}")
        for i in range(1, 8):
            s.A(f"v_sub_f32 v{t}, v{u+i}, v{mean}")
            s.A(f"v_fmac_f32 v{rinv}, v{t}, v{t}")
        s.allreduce("add", rinv, t)
        s.A(f"v_mul_f32 v{rinv}, {f32(1/512)}, v{rinv}")
        s.rbf(mean, mean)
        s.rbf(rinv, rinv)
        s.A(f"v_add_f32 v{rinv}, {f32(1e-5)}, v{rinv}")
        s.rbf(rinv, rinv)
        s.A(f"v_sqrt_f32 v{rinv}, v{rinv}")
        s.nop(1)
        s.rbf(rinv, rinv)
        s.A(f"v_rcp_f32 v{rinv}, v{rinv}")
        s.nop(1)
    def poll(s, loads, tags, acc, code, sleep=0):
        lp, ok = s.new("poll"), s.new("ok")
        s.A(f"s_mov_b32 s52, {s.cap}")
        s.label(lp)
        for t in loads: s.A(t)
        s.A("s_waitcnt vmcnt(0)")
        s.A(f"v_xor_b32 v{acc}, s46, v{tags[0]}")
        for t in tags[1:]:
            s.A(f"v_bitop3_b32 v{acc}, v{acc}, v{t}, s46 bitop3:0xf6")
        s.A(f"v_cmp_ne_u32 vcc, 0, v{acc}")
        s.A("s_cbranch_vccz " + ok)
        if sleep: s.A(f"s_sleep {sleep}")
        s.A("s_sub_u32 s52, s52, 1")
        s.A("s_cbranch_scc0 " + lp)
        s.A("s_branch L_fail")
        s.label(ok)
    def ldspoll(s, addr_v, off, dst, n, want):
        lp, ok = s.new("lp"), s.new("lok")
        s.A(f"s_mov_b32 s52, {s.cap}")
        s.label(lp)
        if n == 1: s.A(f"ds_read_b32 v{dst}, v{addr_v} offset:{off}")
        else: s.A(f"ds_read_b128 v[{dst}:{dst+3}], v{addr_v} offset:{off}")
        s.A("s_waitcnt lgkmcnt(0)")
        s.A(f"v_cmp_ne_u32 vcc, {want}, v{dst}")
        s.A("s_cbranch_vccz " + ok)
        s.A("s_sub_u32 s52, s52, 1")
        s.A("s_cbranch_scc0 " + lp)
        s.A("s_branch L_fail")
        s.label(ok)

def gen(stamps=False, W=4, ST="sc1", LD="sc1"):
    g = G(stamps, W); A = g.A
    g.L.append(HEADER.rstrip("\n"))
    g.L.append(f"; @launch grid=(256,1,1) block=(768,1,1) lds={LDS_BYTES}")
    g.L.append('.amdgcn_target "amdgcn-amd-amdhsa--gfx950"')
    g.L.append(".text")
    g.L.append(f".globl {NAME}_kernel")
    g.L.append(".p2align 8")
    g.L.append(f".type {NAME}_kernel,@function")
    g.L.append(f"{NAME}_kernel:")
    g.stamp(0)
    A("s_cmp_ge_u32 s2, 256")
    A("s_cbranch_scc1 L_end")
    A("s_load_dwordx16 s[4:19], s[0:1], 0")
    A("s_load_dwordx8 s[20:27], s[0:1], 64")
    A("v_lshrrev_b32 v1, 6, v0")
    A("s_lshr_b32 s44, s2, 3")
    A("s_and_b32 s45, s2, 7")
    A("v_readfirstlane_b32 s3, v1")
    A("v_and_b32 v2, 63, v0")
    A("s_lshl_b32 s47, s44, 23")
    A("s_lshl_b32 s48, s45, 17")
    A("s_add_u32 s47, s47, s48")
    A("s_add_u32 s47, s47, 0x700000")
    A("s_cmp_lt_u32 s3, 4")
    A("s_cbranch_scc1 L_aux")
    vK, vV, vS, vQ, vM, vD = 32, 96, 8, 4, 160, 164
    A("v_lshlrev_b32 v1, 4, v0")
    A("v_subrev_u32 v1, 4096, v1")
    A("s_waitcnt lgkmcnt(0)")
    g.srd(28, 6, "s47", 0x20000)
    g.srd(32, 8, "s47", 0x20000)
    A("s_load_dword s46, s[26:27], 0")
    g.vm_reset()
    def kv_issue(n):
        if n == 0 or n == 16:
            so = "0"; A("s_mov_b32 s47, 0")
        else:
            A("s_addk_i32 s47, 0x2000"); so = "s47"
        if n < 16: g.vm_issue(f"K{n}", f"buffer_load_dwordx4 v[{vK+4*n}:{vK+4*n+3}], v1, s[28:31], {so} offen nt")
        else: g.vm_issue(f"V{n-16}", f"buffer_load_dwordx4 v[{vV+4*(n-16)}:{vV+4*(n-16)+3}], v1, s[32:35], {so} offen nt")
    name = lambda n: f"K{n}" if n < 16 else f"V{n-16}"
    for n in range(W): kv_issue(n)
    g.srd(36, 26, None, WS_BYTES)
    A("s_lshl_b32 s48, s44, 17")
    A("s_lshl_b32 s49, s45, 7")
    A("s_add_u32 s48, s48, s49")
    g.srd(40, 12, "s48", 0x20000 - 0x380)
    for t in range(16): A(f"v_mov_b32 v{vS+t}, 0")
    g.masks(vM, 2, 24)
    A("s_sub_u32 s3, s3, 4")
    A("s_waitcnt lgkmcnt(0)")
    A("s_mul_i32 s46, s46, 0x9e3779b1")
    A("s_add_u32 s46, s46, 0x7f4a7c15")
    A("s_barrier")
    nxt = W
    while nxt < 16 + W:
        g.vm_wait(name(nxt - W)); kv_issue(nxt); nxt += 1
    g.stamp(1)
    for _ in range(2): kv_issue(nxt); nxt += 1
    A("v_mov_b32 v3, 0")
    g.ldspoll(3, L_QF, 24, 1, 1)
    A("v_and_b32 v24, 15, v2")
    A("v_lshlrev_b32 v24, 4, v24")
    A(f"ds_read_b128 v[{vQ}:{vQ+3}], v24 offset:{L_Q}")
    A("s_waitcnt lgkmcnt(0)")
    for r in range(4):
        for t in range(16):
            A(f"v_dot2c_f32_bf16 v{vS+t}, v{vK+4*t+r}, v{vQ+r}")
    g.nop(3)
    for t in range(8):
        A(f"v_add_f32_dpp v{vS+t}, v{vS+t}, v{vS+t} row_ror:8 row_mask:0xf bank_mask:0x3")
    for t in range(8):
        A(f"v_add_f32_dpp v{vS+t}, v{vS+t+8}, v{vS+t+8} row_ror:8 row_mask:0xf bank_mask:0xc")
    for t in range(4):
        A(f"v_add_f32_dpp v{vS+t}, v{vS+t}, v{vS+t} row_shl:4 row_mask:0xf bank_mask:0x5")
    for t in range(4):
        A(f"v_add_f32_dpp v{vS+t}, v{vS+t+4}, v{vS+t+4} row_shr:4 row_mask:0xf bank_mask:0xa")
    A("s_mov_b32 s50, 0xcccccccc"); A("s_mov_b32 s51, 0xcccccccc")
    for t in range(4):
        A(f"v_add_f32_dpp v{vS+t}, v{vS+t}, v{vS+t} quad_perm:[2,3,0,1] row_mask:0xf bank_mask:0xf")
    for t in range(2):
        A(f"v_cndmask_b32 v{vS+t}, v{vS+t}, v{vS+t+2}, s[50:51]")
    A("s_mov_b32 s50, 0xaaaaaaaa"); A("s_mov_b32 s51, 0xaaaaaaaa")
    for t in range(2):
        A(f"v_add_f32_dpp v{vS+t}, v{vS+t}, v{vS+t} quad_perm:[1,0,3,2] row_mask:0xf bank_mask:0xf")
    A(f"v_cndmask_b32 v{vS}, v{vS}, v{vS+1}, s[50:51]")
    g.vm_wait(name(nxt - W - 2)); kv_issue(nxt); nxt += 1
    g.rbf(vS, vS)
    A(f"v_mul_f32 v{vS}, {f32(128 ** -0.5)}, v{vS}")
    g.rbf(vS, vS)
    A(f"v_mov_b32 v24, v{vS}")
    g.allreduce("max", 24, 25)
    A(f"v_sub_f32 v{vS}, v{vS}, v24")
    A(f"v_mul_f32 v{vS}, {f32(LOG2E)}, v{vS}")
    A(f"v_exp_f32 v{vS}, v{vS}")
    g.nop(1)
    A(f"v_mov_b32 v26, v{vS}")
    A(f"v_cvt_pk_bf16_f32 v28, v{vS}, v{vS}")
    g.allreduce("add", 26, 25)
    A("v_mov_b32 v25, s46"); A("v_mov_b32 v27, s46")
    A("s_lshl_b32 s48, s2, 3"); A("s_add_u32 s48, s48, s3"); A("s_lshl_b32 s48, s48, 4")
    A(f"s_add_u32 s48, s48, {ML}")
    A("s_mov_b64 exec, 1")
    g.vm_issue("ml", f"buffer_store_dwordx4 v[24:27], v3, s[36:39], s48 offen {ST}")
    A("s_mov_b64 exec, -1")
    A("v_lshrrev_b32 v29, 3, v2"); A("v_lshlrev_b32 v29, 10, v29")
    A("v_and_b32 v30, 7, v2"); A("v_lshl_add_u32 v29, v30, 4, v29")
    A("s_lshl_b32 s49, s3, 14")
    A("s_lshl_b32 s53, s3, 11"); A(f"s_add_u32 s53, s53, {L_WO}")
    vA = vK
    def next_issue():
        nonlocal nxt
        if nxt < 32: kv_issue(nxt)
        elif nxt < 34:
            A("s_mov_b32 m0, s53")
            g.nop(1)
            g.vm_issue(f"WO{nxt-32}", f"buffer_load_dwordx4 v29, s[40:43], s49 offen nt lds")
            if nxt == 32:
                A("s_addk_i32 s49, 0x2000"); A("s_addk_i32 s53, 0x400")
        nxt += 1
    for t in range(16):
        a = vA + 4 * (t & 1)
        for r in range(4):
            A(f"v_and_b32_dpp v{a+r}, v28, v{vM+r} row_newbcast:{t} row_mask:0xf bank_mask:0xf")
        if t == 13:
            g.ldspoll(3, L_MLF, 8, 4, 1)
            A("v_sub_f32 v24, v24, v9")
            A(f"v_mul_f32 v24, {f32(LOG2E)}, v24")
            A("v_exp_f32 v24, v24")
            A("s_lshl_b32 s48, s3, 10")
            A("v_lshlrev_b32 v11, 4, v2")
            A("v_mul_f32 v24, v24, v10")
            A("v_add_u32 v11, s48, v11")
            A("v_mov_b32 v12, 1")
        g.vm_wait(f"V{t}")
        while nxt <= 16 + t + W and nxt < 34: next_issue()
        g.nop(1)
        c = "0" if t == 0 else f"v[{vD}:{vD+3}]"
        A(f"v_mfma_f32_16x16x32_bf16 v[{vD}:{vD+3}], v[{a}:{a+3}], v[{vV+4*t}:{vV+4*t+3}], {c}")
    g.stamp(4)
    g.nop(8)
    for r in range(4): A(f"v_mul_f32 v{vD+r}, v24, v{vD+r}")
    A(f"ds_write_b128 v11, v[{vD}:{vD+3}] offset:{L_OS}")
    A("s_mov_b64 exec, 1")
    A(f"ds_add_rtn_u32 v12, v3, v12 offset:{L_OC}")
    A("s_mov_b64 exec, -1")
    A("v_bfe_u32 v13, v2, 3, 1"); A("v_lshlrev_b32 v13, 4, v13")
    A("v_bfe_u32 v14, v2, 4, 1"); A("v_add_u32 v13, v13, v14")
    A("v_and_b32 v14, 7, v2"); A("v_lshl_add_u32 v13, v14, 1, v13")
    A("v_lshlrev_b32 v13, 4, v13")
    A("s_waitcnt lgkmcnt(0)")
    A("v_readfirstlane_b32 s48, v12")
    A("s_cmp_lg_u32 s48, 7")
    A("s_cbranch_scc1 L_main_done")
    for w in range(8):
        A(f"ds_read_b128 v[{vK+4*w}:{vK+4*w+3}], v13 offset:{L_OS + 1024*w}")
    A("v_lshlrev_b32 v14, 4, v2")
    A("s_lshl_b32 s48, s2, 9"); A(f"s_add_u32 s48, s48, {OP}")
    for lvl, step in enumerate((1, 2, 4)):
        for w in range(0, 8, 2 * step):
            if lvl == 0: A(f"s_waitcnt lgkmcnt({6 - w})")
            for hf in (0, 2):
                a_, b_ = vK + 4 * w + hf, vK + 4 * (w + step) + hf
                A(f"v_pk_add_f32 v[{a_}:{a_+1}], v[{a_}:{a_+1}], v[{b_}:{b_+1}]")
    A(f"v_cvt_pk_bf16_f32 v24, v{vK}, v{vK+1}")
    A(f"v_cvt_pk_bf16_f32 v26, v{vK+2}, v{vK+3}")
    A("s_mov_b32 exec_hi, 0")
    A(f"buffer_store_dwordx4 v[24:27], v14, s[36:39], s48 offen {ST}")
    g.stamp(5)
    g.stamp_write([5])
    g.label("L_main_done")
    if stamps:
        A("s_cmp_lg_u32 s3, 0"); A("s_cbranch_scc1 L_main_end")
        g.stamp_write([0, 1, 4])
        g.label("L_main_end")
    A("s_waitcnt vmcnt(0)")
    A("s_endpgm")
    g.label("L_aux")
    A("s_mul_i32 s48, s45, 43"); A("s_add_u32 s48, s48, 4"); A("s_add_u32 s49, s48, 43")
    A("s_lshr_b32 s48, s48, 3"); A("s_lshr_b32 s49, s49, 3")
    A("s_add_u32 s54, s48, s44")
    A("s_cmp_lt_u32 s54, s49")
    A("s_cselect_b32 s55, 1, 0")
    A("v_lshlrev_b32 v1, 4, v2")
    A("s_waitcnt lgkmcnt(0)")
    A("s_load_dword s46, s[26:27], 0")
    g.srd(36, 26, None, WS_BYTES)
    A("s_cmp_lg_u32 s3, 0")
    A("s_cbranch_scc1 L_aux123")
    vW = 32
    A("global_load_dwordx4 v[4:7], v1, s[4:5]")
    A("v_and_b32 v8, 15, v2"); A("v_lshrrev_b32 v9, 4, v2")
    A("v_lshl_add_u32 v10, v8, 2, v9"); A("s_lshl_b32 s48, s45, 6"); A("v_add_lshl_u32 v10, v10, s48, 1")
    A("global_load_ushort v11, v10, s[4:5]")
    A("s_lshl_b32 s48, s45, 19"); A("s_lshl_b32 s49, s44, 8"); A("s_add_u32 s48, s48, s49")
    g.srd(28, 10, "s48", 0x80000 - 0x1f00)
    A("v_lshlrev_b32 v10, 13, v9"); A("v_lshl_add_u32 v10, v8, 4, v10")
    A("s_mov_b32 s47, 0")
    for t in range(16):
        A(f"buffer_load_dwordx4 v[{vW+4*t}:{vW+4*t+3}], v10, s[28:31], s47 offen nt")
        if t < 15: A("s_add_u32 s47, s47, 0x8000")
    A("v_mov_b32 v3, 0")
    A("v_mov_b32 v12, 0"); A("v_mov_b32 v13, 0"); A("v_mov_b32 v14, 0"); A("v_mov_b32 v15, 0")
    A(f"ds_write_b128 v3, v[12:15] offset:{L_QF}")
    A(f"ds_write_b128 v3, v[12:15] offset:{L_MLF}")
    A(f"ds_write_b128 v3, v[12:15] offset:{L_OC}")
    A("s_waitcnt lgkmcnt(0)")
    A("s_barrier")
    A("s_mul_i32 s46, s46, 0x9e3779b1"); A("s_add_u32 s46, s46, 0x7f4a7c15")
    g.masks(160, 2, 24)
    A("s_waitcnt vmcnt(16)")
    g.layernorm(4, 12, 20, 21, 24)
    A("v_lshlrev_b32 v11, 16, v11")
    A("v_sub_f32 v11, v11, v20")
    g.rbf(11, 11)
    A("v_mul_f32 v11, v11, v21")
    A("v_cvt_pk_bf16_f32 v28, v11, v11")
    g.nop(2)
    for t in range(16):
        a = 12 + 4 * (t & 1)
        for r in range(4):
            A(f"v_and_b32_dpp v{a+r}, v28, v{160+r} row_newbcast:{t} row_mask:0xf bank_mask:0xf")
        A(f"s_waitcnt vmcnt({15-t})")
        g.nop(1)
        c = "0" if t == 0 else "v[164:167]"
        A(f"v_mfma_f32_16x16x32_bf16 v[164:167], v[{a}:{a+3}], v[{vW+4*t}:{vW+4*t+3}], {c}")
    A("s_mov_b32 s50, 0"); A("s_mov_b32 s51, -1")
    A("v_mov_b32 v25, s46"); A("v_mov_b32 v27, s46")
    A("s_lshl_b32 s48, s2, 10"); A(f"s_add_u32 s48, s48, {QP}")
    g.nop(4)
    A("v_cndmask_b32 v24, v164, v166, s[50:51]")
    A("v_cndmask_b32 v26, v165, v167, s[50:51]")
    A(f"buffer_store_dwordx4 v[24:27], v1, s[36:39], s48 offen {ST}")
    A("s_lshl_b32 s48, s44, 13"); A(f"s_add_u32 s48, s48, {QP}"); A("s_add_u32 s49, s48, 0x1000")
    loads = [f"buffer_load_dwordx4 v[{vW+4*p}:{vW+4*p+3}], v1, s[36:39], {'s48' if p < 4 else 's49'} offen offset:{(p&3)*1024} {LD}" for p in range(8)]
    g.poll(loads, [vW + 4 * p + k for p in range(8) for k in (1, 3)], 24, 1, 4)
    for p in range(1, 8):
        A(f"v_add_f32 v{vW}, v{vW}, v{vW+4*p}")
        A(f"v_add_f32 v{vW+2}, v{vW+2}, v{vW+4*p+2}")
    A("v_bfe_u32 v12, v2, 4, 1"); A("v_lshrrev_b32 v13, 5, v2")
    A("v_lshl_add_u32 v12, v12, 1, v13"); A("v_lshl_add_u32 v12, v8, 2, v12"); A("v_lshlrev_b32 v12, 2, v12")
    A(f"v_cvt_pk_bf16_f32 v13, v{vW}, v{vW+2}")
    A("v_mov_b32 v14, 1")
    A(f"ds_write_b32 v12, v13 offset:{L_Q}")
    A(f"ds_write_b32 v3, v14 offset:{L_QF}")
    g.stamp(2)
    A("s_lshl_b32 s48, s44, 10"); A(f"s_add_u32 s48, s48, {ML}")
    g.poll([f"buffer_load_dwordx4 v[{vW}:{vW+3}], v1, s[36:39], s48 offen {LD}"], [vW + 1, vW + 3], 24, 2, 8)
    A(f"v_mov_b32 v13, v{vW}")
    g.allreduce("max", 13, 24)
    A(f"v_sub_f32 v14, v{vW}, v13")
    A(f"v_mul_f32 v14, {f32(LOG2E)}, v14")
    A("v_exp_f32 v14, v14")
    g.nop(1)
    A(f"v_mul_f32 v14, v14, v{vW+2}")
    g.allreduce("add", 14, 24)
    A("v_rcp_f32 v14, v14")
    A("v_mov_b32 v12, 1")
    g.nop(1)
    A(f"ds_write2_b32 v3, v13, v14 offset0:{(L_MLF+4)//4} offset1:{(L_MLF+8)//4}")
    A(f"ds_write_b32 v3, v12 offset:{L_MLF}")
    g.stamp(3)
    A("s_branch L_tail")
    g.label("L_aux123")
    A("s_cmp_eq_u32 s55, 0")
    A("s_cbranch_scc1 L_aux_noffn")
    A("s_cmp_eq_u32 s3, 3")
    A("s_cbranch_scc1 L_down")
    A("global_load_dwordx4 v[4:7], v1, s[4:5]")
    A("s_sub_u32 s53, s3, 1")
    A("v_bfe_u32 v8, v2, 2, 1"); A("v_cmp_eq_u32 vcc, 1, v8")
    A("v_mov_b32 v8, s16"); A("v_mov_b32 v9, s17"); A("v_mov_b32 v10, s18"); A("v_mov_b32 v11, s19")
    A("v_cndmask_b32 v8, v8, v10, vcc"); A("v_cndmask_b32 v9, v9, v11, vcc")
    A("v_lshrrev_b32 v12, 3, v2"); A(f"v_mul_u32_u24 v10, {4*2752}, v12")
    A("v_and_b32 v11, 3, v2"); A("v_lshl_add_u32 v10, v11, 4, v10")
    A(f"s_mul_i32 s48, s53, {256*2752}"); A("s_lshl_b32 s49, s54, 6"); A("s_add_u32 s48, s48, s49")
    A("v_add_u32 v10, s48, v10"); A("v_mov_b32 v11, 0")
    A("v_lshl_add_u64 v[8:9], v[8:9], 0, v[10:11]")
    A(f"s_mov_b32 s48, {2*2752}"); A("s_mov_b32 s49, 0")
    A(f"s_mov_b32 s50, {30*2752}"); A("s_mov_b32 s51, 0")
    NB = 16; FW = 8
    g.vm_reset(); g.vm.append("x")
    def gu_issue(n):
        tt = n & 3
        b = vW + 4 * (n % NB)
        g.vm_issue(f"G{n}", f"global_load_dwordx4 v[{b}:{b+3}], v[8:9], off offset:{(tt&1)*2752} nt")
        if tt == 1: A("v_lshl_add_u64 v[8:9], v[8:9], 0, s[48:49]")
        if tt == 3 and n < 31: A("v_lshl_add_u64 v[8:9], v[8:9], 0, s[50:51]")
    for n in range(FW): gu_issue(n)
    A("s_barrier")
    g.masks(160, 2, 24)
    g.vm_wait("x")
    g.layernorm(4, 16, 14, 15, 24)
    for i in range(8):
        A(f"v_sub_f32 v{16+i}, v{16+i}, v14")
        g.rbf(16 + i, 16 + i)
        A(f"v_mul_f32 v{16+i}, v{16+i}, v15")
        A(f"v_cvt_pk_bf16_f32 v{16+i}, v{16+i}, v{16+i}")
    A("s_lshl_b32 s47, s53, 11"); A(f"s_add_u32 s47, s47, {L_XN}")
    A("v_lshl_add_u32 v13, v2, 5, s47")
    A("ds_write_b128 v13, v[16:19]"); A("ds_write_b128 v13, v[20:23] offset:16")
    A("s_mul_i32 s47, s53, 3072"); A(f"s_add_u32 s47, s47, {L_XN}")
    A("v_lshl_add_u32 v13, v12, 4, s47")
    for T in range(8):
        A(f"ds_read_b128 v[{100+4*T}:{103+4*T}], v13 offset:{128*T}")
    A("s_waitcnt lgkmcnt(0)")
    nx = FW
    for n in range(32):
        a = 16 + 4 * (n & 1)
        for r in range(4): A(f"v_and_b32 v{a+r}, v{100+n}, v{160+r}")
        g.vm_wait(f"G{n}")
        g.nop(1)
        b = vW + 4 * (n % NB)
        c = "0" if n == 0 else "v[164:167]"
        A(f"v_mfma_f32_16x16x32_bf16 v[164:167], v[{a}:{a+3}], v[{b}:{b+3}], {c}")
        if nx < 32: gu_issue(nx); nx += 1
    A("s_lshl_b32 s47, s53, 10"); A(f"s_add_u32 s47, s47, {L_FD}")
    A("v_add_u32 v13, s47, v1"); A("v_mov_b32 v3, 0"); A("v_mov_b32 v12, 1")
    g.nop(4)
    A("ds_write_b128 v13, v[164:167]")
    A("s_mov_b64 exec, 1")
    A(f"ds_add_u32 v3, v12 offset:{L_FC}")
    A("s_mov_b64 exec, -1")
    A("s_branch L_tail0")
    g.label("L_down")
    A("s_lshl_b32 s48, s54, 15")
    g.srd(28, 20, "s48", 0x8000)
    A("v_lshrrev_b32 v9, 4, v2"); A("v_and_b32 v8, 15, v2")
    A("v_lshlrev_b32 v10, 10, v9"); A("v_lshl_add_u32 v10, v8, 4, v10")
    g.vm_reset()
    def dn_issue(n):
        tp, q = n >> 2, n & 3
        if q == 0: A(f"s_movk_i32 s47, {tp*4096}")
        g.vm_issue(f"D{n}", f"buffer_load_dwordx4 v[{vW+4*n}:{vW+4*n+3}], v10, s[28:31], s47 offen offset:{q*256} nt")
    DW = 4
    for n in range(DW): dn_issue(n)
    A("s_barrier")
    g.masks(160, 2, 24)
    for n in range(DW, 32):
        g.vm_wait(f"D{n-DW}"); dn_issue(n)
    A("v_and_b32 v11, 7, v8"); A("v_lshl_add_u32 v11, v11, 2, v9")
    A("v_bfe_u32 v12, v11, 2, 1"); A("v_lshlrev_b32 v12, 4, v12")
    A("v_lshrrev_b32 v13, 3, v11"); A("v_add_u32 v12, v12, v13")
    A("v_and_b32 v13, 3, v11"); A("v_lshl_add_u32 v12, v12, 2, v13"); A("v_lshlrev_b32 v12, 2, v12")
    A("v_mov_b32 v3, 0")
    g.ldspoll(3, L_FC, 24, 1, 2)
    offs = [0, 640, 1024, 1664, 64, 704, 1088, 1728]
    for i, o in enumerate(offs): A(f"ds_read_b32 v{16+i}, v12 offset:{L_FD+o}")
    A("s_waitcnt lgkmcnt(0)")
    A("v_add_f32 v16, v16, v17"); A("v_add_f32 v18, v18, v19"); A("v_add_f32 v20, v20, v21"); A("v_add_f32 v22, v22, v23")
    A("v_add_f32 v16, v16, v18"); A("v_add_f32 v20, v20, v22")
    g.rbf(16, 16); g.rbf(20, 20)
    A("v_mul_f32 v17, v16, v16")
    A(f"v_mul_f32 v17, {f32(0.044715)}, v17")
    A("v_fma_f32 v17, v17, v16, v16")
    A(f"v_mul_f32 v17, {f32(-2*0.7978845608028654*LOG2E)}, v17")
    A("v_exp_f32 v17, v17"); g.nop(1)
    A("v_add_f32 v17, 1.0, v17")
    A("v_rcp_f32 v17, v17"); g.nop(1)
    A("v_mul_f32 v16, v16, v17")
    g.rbf(16, 16)
    A("v_mul_f32 v16, v16, v20")
    A("v_cvt_pk_bf16_f32 v28, v16, v16")
    A("s_waitcnt vmcnt(0) lgkmcnt(0)")
    A("s_mul_i32 s46, s46, 0x9e3779b1"); A("s_add_u32 s46, s46, 0x7f4a7c15")
    vDq = 4
    for tp in range(8):
        a = 20 + 4 * (tp & 1)
        for r in range(4):
            A(f"v_and_b32_dpp v{a+r}, v28, v{160+r} row_newbcast:{tp} row_mask:0xf bank_mask:0xf")
        g.nop(2)
        for q in range(4):
            c = "0" if tp == 0 else f"v[{vDq+4*q}:{vDq+4*q+3}]"
            b = vW + 4 * (4 * tp + q)
            A(f"v_mfma_f32_16x16x32_bf16 v[{vDq+4*q}:{vDq+4*q+3}], v[{a}:{a+3}], v[{b}:{b+3}], {c}")
    A("v_bfe_u32 v29, v2, 1, 3"); A(f"v_mul_u32_u24 v29, {48*128}, v29")
    A("v_and_b32 v30, 1, v2"); A("v_lshl_add_u32 v29, v30, 6, v29")
    A("v_bfe_u32 v30, v2, 4, 1"); A("v_lshl_add_u32 v29, v30, 5, v29")
    A("v_lshrrev_b32 v30, 5, v2"); A("v_lshl_add_u32 v29, v30, 4, v29")
    A("s_lshl_b32 s48, s54, 7"); A(f"s_add_u32 s48, s48, {FP}")
    A("s_mov_b32 s50, 0"); A("s_mov_b32 s51, -1")
    for q in range(4):
        o = 32 + 4 * q
        A(f"v_cndmask_b32 v{o}, v{vDq+4*q}, v{vDq+4*q+2}, s[50:51]")
        A(f"v_cndmask_b32 v{o+2}, v{vDq+4*q+1}, v{vDq+4*q+3}, s[50:51]")
        A(f"v_mov_b32 v{o+1}, s46"); A(f"v_mov_b32 v{o+3}, s46")
        A(f"buffer_store_dwordx4 v[{o}:{o+3}], v29, s[36:39], s48 offen {ST}")
        if q < 3: A(f"s_add_u32 s48, s48, {8*48*128}")
    A("s_branch L_tail")
    g.label("L_aux_noffn")
    A("s_barrier")
    g.label("L_tail0")
    A("s_waitcnt lgkmcnt(0)")
    A("s_mul_i32 s46, s46, 0x9e3779b1"); A("s_add_u32 s46, s46, 0x7f4a7c15")
    g.label("L_tail")
    A("s_lshl_b32 s53, s45, 2"); A("s_add_u32 s53, s53, s3")
    A("v_and_b32 v8, 7, v2"); A("s_lshl_b32 s48, s53, 5"); A("v_lshl_add_u32 v8, v8, 2, s48")
    A(f"s_cmp_lg_u32 s44, {g.hid}")
    A("s_cbranch_scc1 L_t1")
    A("global_load_dword v9, v8, s[4:5]")
    A(f"s_mul_i32 s48, s53, {48*128}"); A(f"s_add_u32 s48, s48, {FP}"); A("s_add_u32 s49, s48, 0x1000")
    A("v_cmp_gt_u32 vcc, 24, v2"); A("v_and_b32 v10, 7, v2"); A("v_lshlrev_b32 v10, 4, v10")
    A("v_cndmask_b32 v10, v10, v1, vcc")
    A("s_mov_b64 s[50:51], vcc")
    loads = [f"buffer_load_dwordx4 v[{vW+4*p}:{vW+4*p+3}], {'v10' if p == 5 else 'v1'}, s[36:39], {'s48' if p < 4 else 's49'} offen offset:{(p&3)*1024} {LD}" for p in range(6)]
    g.poll(loads, [vW + 4 * p + k for p in range(6) for k in (1, 3)], 24, 3, 16)
    A(f"v_cndmask_b32 v{vW+20}, 0, v{vW+20}, s[50:51]")
    A(f"v_cndmask_b32 v{vW+22}, 0, v{vW+22}, s[50:51]")
    for p in range(1, 6):
        A(f"v_add_f32 v{vW}, v{vW}, v{vW+4*p}")
        A(f"v_add_f32 v{vW+2}, v{vW+2}, v{vW+4*p+2}")
    def red8(a, b, t):
        g.nop(2)
        for v in (a, b): A(f"v_add_f32_dpp v{v}, v{v}, v{v} row_ror:8 row_mask:0xf bank_mask:0xf")
        for sw in ("16", "32"):
            A(f"v_mov_b32 v{t}, v{a}"); A(f"v_mov_b32 v{t+1}, v{b}")
            g.nop(2)
            A(f"v_permlane{sw}_swap_b32 v{t}, v{a}"); A(f"v_permlane{sw}_swap_b32 v{t+1}, v{b}")
            g.nop(1)
            A(f"v_add_f32 v{a}, v{a}, v{t}"); A(f"v_add_f32 v{b}, v{b}, v{t+1}")
    red8(vW, vW + 2, 24)
    for i, v in enumerate((vW, vW + 2)):
        d = 100 + i
        g.rbf(d, v)
        A(f"v_mul_f32 v24, {f32(-LOG2E)}, v{d}")
        A("v_exp_f32 v24, v24"); g.nop(1)
        A("v_add_f32 v24, 1.0, v24")
        A("v_rcp_f32 v24, v24"); g.nop(1)
        A(f"v_mul_f32 v{d}, v{d}, v24")
        g.rbf(d, d)
    A("v_lshlrev_b32 v102, 16, v9"); A("v_and_b32 v103, 0xffff0000, v9")
    g.label("L_t1")
    A("v_and_b32 v10, 7, v2"); A("v_lshlrev_b32 v10, 9, v10")
    A("v_bfe_u32 v11, v2, 3, 1"); A("v_lshl_add_u32 v10, v11, 6, v10")
    A("v_lshrrev_b32 v11, 4, v2"); A("v_lshl_add_u32 v10, v11, 4, v10")
    A("s_lshl_b32 s48, s44, 12"); A(f"s_add_u32 s48, s48, {OP}")
    A("v_bfe_u32 v12, v2, 2, 2"); A("v_lshl_add_u32 v12, v11, 4, v12"); A("v_lshlrev_b32 v12, 7, v12")
    A("v_and_b32 v13, 3, v2"); A("v_lshl_add_u32 v12, v13, 3, v12")
    A("s_lshl_b32 s49, s3, 5"); A(f"s_add_u32 s49, s49, {L_WO}"); A("v_add_u32 v12, s49, v12")
    loads = [f"buffer_load_dwordx4 v[{vW+4*k}:{vW+4*k+3}], v10, s[36:39], s48 offen offset:{k*128} {LD}" for k in range(4)]
    A("s_barrier")
    g.stamp(9)
    vB = 64
    for hh in range(2):
        for f in range(2):
            for z in range(2):
                b = vB + 8 * hh + 4 * f + 2 * z
                A(f"ds_read_b64_tr_b16 v[{b}:{b+1}], v12 offset:{(64*hh + 8*f + 4*z)*128}")
    g.poll(loads, [vW + 4 * k + z for k in range(4) for z in (1, 3)], 24, 4)
    g.stamp(6)
    for f in range(2):
        a = vW + 8 * f
        A(f"v_mov_b32 v{a+1}, v{a+2}"); A(f"v_mov_b32 v{a+2}, v{a+4}"); A(f"v_mov_b32 v{a+3}, v{a+6}")
    A("s_waitcnt lgkmcnt(0)")
    g.nop(1)
    for f in range(2):
        for hh in range(2):
            d = 16 + 4 * hh; a = vW + 8 * f; b = vB + 8 * hh + 4 * f
            c = "0" if f == 0 else f"v[{d}:{d+3}]"
            A(f"v_mfma_f32_16x16x32_bf16 v[{d}:{d+3}], v[{a}:{a+3}], v[{b}:{b+3}], {c}")
    A("s_mov_b32 s50, 0"); A("s_mov_b32 s51, -1")
    A("s_lshl_b32 s48, s53, 5"); A("s_add_u32 s48, s48, s44"); A("s_lshl_b32 s48, s48, 7"); A(f"s_add_u32 s48, s48, {YP}")
    A("v_lshlrev_b32 v10, 3, v2"); A("v_mov_b32 v25, s46")
    g.nop(1)
    for r in range(4): A(f"v_cndmask_b32 v{16+r}, v{16+r}, v{20+r}, s[50:51]")
    A("v_add_f32 v16, v16, v17"); A("v_add_f32 v18, v18, v19"); A("v_add_f32 v24, v16, v18")
    for sw in ("16", "32"):
        A("v_mov_b32 v16, v24"); g.nop(2)
        A(f"v_permlane{sw}_swap_b32 v16, v24"); g.nop(1)
        A("v_add_f32 v24, v24, v16")
    A("s_mov_b64 exec, 0xffff")
    A(f"buffer_store_dwordx2 v[24:25], v10, s[36:39], s48 offen {ST}")
    A("s_mov_b64 exec, -1")
    g.stamp(7); g.stamp(8)
    A(f"s_cmp_lg_u32 s44, {g.hid}")
    A("s_cbranch_scc1 L_aux_done")
    A("s_lshl_b32 s48, s53, 12"); A(f"s_add_u32 s48, s48, {YP}")
    loads = [f"buffer_load_dwordx4 v[{vW+4*k}:{vW+4*k+3}], v1, s[36:39], s48 offen offset:{k*1024} {LD}" for k in range(4)]
    g.poll(loads, [vW + 4 * k + z for k in range(4) for z in (1, 3)], 24, 5)
    A(f"v_add_f32 v{vW}, v{vW}, v{vW+4}"); A(f"v_add_f32 v{vW+2}, v{vW+2}, v{vW+6}")
    A(f"v_add_f32 v{vW+8}, v{vW+8}, v{vW+12}"); A(f"v_add_f32 v{vW+10}, v{vW+10}, v{vW+14}")
    A(f"v_add_f32 v{vW}, v{vW}, v{vW+8}"); A(f"v_add_f32 v{vW+2}, v{vW+2}, v{vW+10}")
    red8(vW, vW + 2, 24)
    for i, v in enumerate((vW, vW + 2)):
        g.rbf(v, v)
        A(f"v_mul_f32 v{v}, v{v}, v{100+i}")
        g.rbf(v, v)
        A(f"v_add_f32 v{v}, v{v}, v{102+i}")
    A(f"v_cvt_pk_bf16_f32 v24, v{vW}, v{vW+2}")
    A("s_mov_b64 exec, 0xff")
    A("global_store_dword v8, v24, s[22:23]")
    A("s_cmp_lg_u32 s53, 0")
    A("s_cbranch_scc1 L_fin_done")
    A("v_mov_b32 v3, 0"); A("v_mov_b32 v24, s46")
    A("s_mov_b64 exec, 1")
    A("global_store_dword v3, v24, s[26:27]")
    g.label("L_fin_done")
    g.stamp(8)
    g.label("L_aux_done")
    if stamps:
        A("s_cmp_lg_u32 s3, 0"); A("s_cbranch_scc1 L_end")
        g.stamp_write([2, 3, 6, 7, 8, 9])
    g.label("L_fail")
    g.label("L_end")
    A("s_endpgm")
    g.L += ['.section .rodata,"a"', ".p2align 6", f".amdhsa_kernel {NAME}_kernel",
            "  .amdhsa_next_free_vgpr 168", "  .amdhsa_next_free_sgpr 96", "  .amdhsa_accum_offset 168",
            "  .amdhsa_group_segment_fixed_size 0", "  .amdhsa_kernarg_size 96", "  .amdhsa_user_sgpr_count 2",
            "  .amdhsa_user_sgpr_kernarg_segment_ptr 1", "  .amdhsa_system_sgpr_workgroup_id_x 1", ".end_amdhsa_kernel"]
    return "\n".join(g.L) + "\n"

if __name__ == "__main__":
    open("v1.s", "w").write(gen(False))
    open("v1_st.s", "w").write(gen(True))
```

```python
import sys, struct
from gen import G, f32, NAME, HEADER, LOG2E
import gen as _g

QP, AP, OP, YP, FP = 0x1000, 0x44000, 0x70000, 0x98000, 0xC0000
WS_BYTES = 0x100000
L_Q, L_QF, L_M = 0x0, 0x100, 0x120
L_OS = 0x400
L_WO = 0x4000
LDS_BYTES = 0x8000
_g.NSTAMP = 12

def gen(stamps=False, W=4, ST="sc1", LD="sc1", QKAT=26, dbg=False, HID=31, WOLATE=True, PF=True):
    g = G(stamps, W); A = g.A
    g.L.append(HEADER.rstrip("\n"))
    g.L.append(f"; @launch grid=(256,1,1) block=(768,1,1) lds={LDS_BYTES}")
    g.L.append('.amdgcn_target "amdgcn-amd-amdhsa--gfx950"')
    g.L.append(".text")
    g.L.append(f".globl {NAME}_kernel")
    g.L.append(".p2align 8")
    g.L.append(f".type {NAME}_kernel,@function")
    g.L.append(f"{NAME}_kernel:")
    g.stamp(0)
    if dbg: A("s_memrealtime s[90:91]")
    A("s_cmp_ge_u32 s2, 256")
    A("s_cbranch_scc1 L_end")
    A("s_load_dwordx16 s[4:19], s[0:1], 0")
    A("s_load_dwordx8 s[20:27], s[0:1], 64")
    A("v_lshrrev_b32 v1, 6, v0")
    A("s_lshr_b32 s44, s2, 3")
    A("s_and_b32 s45, s2, 7")
    A("v_readfirstlane_b32 s3, v1")
    A("v_and_b32 v2, 63, v0")
    A("s_lshl_b32 s47, s44, 23")
    A("s_lshl_b32 s48, s45, 17")
    A("s_add_u32 s47, s47, s48")
    A("s_add_u32 s47, s47, 0x700000")
    A("s_cmp_lt_u32 s3, 4")
    A("s_cbranch_scc1 L_aux")
    def dbgmax(slot, inv=False):
        if not dbg: return
        if not inv:
            A("s_memrealtime s[92:93]"); A("s_waitcnt lgkmcnt(0)")
            A("v_mov_b32 v30, s92")
        else:
            A("s_not_b32 s92, s90"); A("v_mov_b32 v30, s92")
        A("v_mov_b32 v31, 0")
        A("s_mov_b64 s[94:95], exec"); A("s_mov_b64 exec, 1")
        A(f"global_atomic_umax v31, v30, s[24:25] offset:{4*slot}")
        A("s_mov_b64 exec, s[94:95]")
    def tag():
        A("s_mul_i32 s46, s46, 0x9e3779b1"); A("s_add_u32 s46, s46, 0x7f4a7c15")
    def red8(a, b, t):
        g.nop(2)
        for v in (a, b): A(f"v_add_f32_dpp v{v}, v{v}, v{v} row_ror:8 row_mask:0xf bank_mask:0xf")
        for sw in ("16", "32"):
            A(f"v_mov_b32 v{t}, v{a}"); A(f"v_mov_b32 v{t+1}, v{b}")
            g.nop(1)
            A(f"v_permlane{sw}_swap_b32 v{t}, v{a}"); A(f"v_permlane{sw}_swap_b32 v{t+1}, v{b}")
            A(f"v_add_f32 v{a}, v{a}, v{t}"); A(f"v_add_f32 v{b}, v{b}, v{t+1}")
    vK, vV, vS, vQ, vM, vD = 32, 96, 8, 4, 160, 164
    A("v_lshlrev_b32 v1, 4, v0")
    A("v_subrev_u32 v1, 4096, v1")
    A("s_waitcnt lgkmcnt(0)")
    g.srd(28, 6, "s47", 0x20000)
    g.srd(32, 8, "s47", 0x20000)
    A("s_load_dword s46, s[26:27], 0")
    g.vm_reset()
    order = [f"K{n}" for n in range(16)] + [f"V{n}" for n in range(16)]
    if WOLATE: order += ["WO0", "WO1"]
    else: order = order[:16] + ["WO0", "WO1"] + order[16:]
    nxt = 0
    def issue():
        nonlocal nxt
        nm = order[nxt]; nxt += 1
        if nm[0] == "W":
            A("s_mov_b32 m0, s53"); g.nop(1)
            g.vm_issue(nm, f"buffer_load_dwordx4 v29, s[40:43], s49 offen nt lds")
            if nm == "WO0": A("s_addk_i32 s49, 0x2000"); A("s_addk_i32 s53, 0x400")
            return
        n = int(nm[1:])
        if n == 0: so = "0"; A("s_mov_b32 s47, 0")
        else: A("s_addk_i32 s47, 0x2000"); so = "s47"
        b, srd = (vK, "s[28:31]") if nm[0] == "K" else (vV, "s[32:35]")
        g.vm_issue(nm, f"buffer_load_dwordx4 v[{b+4*n}:{b+4*n+3}], v1, {srd}, {so} offen nt")
    for n in range(W): issue()
    g.srd(36, 26, None, WS_BYTES)
    A("s_lshl_b32 s48, s44, 17"); A("s_lshl_b32 s49, s45, 7"); A("s_add_u32 s48, s48, s49")
    g.srd(40, 12, "s48", 0x20000 - 0x380)
    for t in range(16): A(f"v_mov_b32 v{vS+t}, 0")
    g.masks(vM, 2, 24)
    A("s_sub_u32 s3, s3, 4")
    A("v_lshrrev_b32 v29, 3, v2"); A("v_lshlrev_b32 v29, 10, v29")
    A("v_and_b32 v30, 7, v2"); A("v_lshl_add_u32 v29, v30, 4, v29")
    A("s_lshl_b32 s49, s3, 14")
    A("s_lshl_b32 s53, s3, 11"); A(f"s_add_u32 s53, s53, {L_WO}")
    A("v_mov_b32 v3, 0")
    A("s_waitcnt lgkmcnt(0)")
    tag()
    A("s_barrier")
    while nxt < QKAT:
        g.vm_wait(order[nxt - W])
        if order[nxt - W] == "K15": g.stamp(1)
        issue()
    for _ in range(2): issue()
    g.stamp(10)
    g.ldspoll(3, L_QF, 24, 1, 1)
    A("v_and_b32 v24, 15, v2")
    A("v_lshlrev_b32 v24, 4, v24")
    A(f"ds_read_b128 v[{vQ}:{vQ+3}], v24 offset:{L_Q}")
    A("s_waitcnt lgkmcnt(0)")
    for r in range(4):
        for t in range(16):
            A(f"v_dot2c_f32_bf16 v{vS+t}, v{vK+4*t+r}, v{vQ+r}")
    g.nop(3)
    for t in range(8):
        A(f"v_add_f32_dpp v{vS+t}, v{vS+t}, v{vS+t} row_ror:8 row_mask:0xf bank_mask:0x3")
    for t in range(8):
        A(f"v_add_f32_dpp v{vS+t}, v{vS+t+8}, v{vS+t+8} row_ror:8 row_mask:0xf bank_mask:0xc")
    for t in range(4):
        A(f"v_add_f32_dpp v{vS+t}, v{vS+t}, v{vS+t} row_shl:4 row_mask:0xf bank_mask:0x5")
    for t in range(4):
        A(f"v_add_f32_dpp v{vS+t}, v{vS+t+4}, v{vS+t+4} row_shr:4 row_mask:0xf bank_mask:0xa")
    A("s_mov_b32 s50, 0xcccccccc"); A("s_mov_b32 s51, 0xcccccccc")
    for t in range(4):
        A(f"v_add_f32_dpp v{vS+t}, v{vS+t}, v{vS+t} quad_perm:[2,3,0,1] row_mask:0xf bank_mask:0xf")
    for t in range(2):
        A(f"v_cndmask_b32 v{vS+t}, v{vS+t}, v{vS+t+2}, s[50:51]")
    A("s_mov_b32 s50, 0xaaaaaaaa"); A("s_mov_b32 s51, 0xaaaaaaaa")
    for t in range(2):
        A(f"v_add_f32_dpp v{vS+t}, v{vS+t}, v{vS+t} quad_perm:[1,0,3,2] row_mask:0xf bank_mask:0xf")
    A(f"v_cndmask_b32 v{vS}, v{vS}, v{vS+1}, s[50:51]")
    g.rbf(vS, vS)
    A(f"v_mul_f32 v{vS}, {f32(128 ** -0.5)}, v{vS}")
    g.rbf(vS, vS)
    A(f"v_mov_b32 v24, v{vS}")
    g.allreduce("max", 24, 25)
    A("s_lshl_b32 s48, s3, 2"); A("v_mov_b32 v25, s48")
    A(f"ds_write_b32 v25, v24 offset:{L_M}")
    A(f"v_sub_f32 v{vS}, v{vS}, v24")
    A(f"v_mul_f32 v{vS}, {f32(LOG2E)}, v{vS}")
    A(f"v_exp_f32 v{vS}, v{vS}")
    g.nop(1)
    A(f"v_mov_b32 v26, v{vS}")
    A(f"v_cvt_pk_bf16_f32 v28, v{vS}, v{vS}")
    g.allreduce("add", 26, 25)
    g.stamp(11)
    vA = vK
    for t in range(16):
        a = vA + 4 * (t & 1)
        for r in range(4):
            A(f"v_and_b32_dpp v{a+r}, v28, v{vM+r} row_newbcast:{t} row_mask:0xf bank_mask:0xf")
        if t == 13:
            lp, ok = g.new("mp"), g.new("mok")
            A("v_lshlrev_b32 v8, 2, v30")
            A(f"s_mov_b32 s52, {g.cap}")
            g.label(lp)
            A(f"ds_read_b32 v9, v8 offset:{L_M}")
            A("s_waitcnt lgkmcnt(0)")
            A("v_cmp_eq_u32 vcc, -1, v9")
            A("s_cbranch_vccz " + ok)
            A("s_sub_u32 s52, s52, 1"); A("s_cbranch_scc0 " + lp); A("s_branch L_fail")
            g.label(ok)
            for r_ in (4, 2, 1):
                A(f"v_max_f32_dpp v9, v9, v9 row_ror:{r_} row_mask:0xf bank_mask:0xf")
                g.nop(2)
            A("v_sub_f32 v24, v24, v9")
            A(f"v_mul_f32 v24, {f32(LOG2E)}, v24")
            A("v_exp_f32 v24, v24")
            A("v_mul_f32 v12, 0.125, v9" .replace("0.125", f32(0.125)))
            A("s_lshl_b32 s48, s3, 10")
            A("v_lshlrev_b32 v11, 4, v2")
            A("v_mul_f32 v14, v24, v26")
            A("v_add_u32 v11, s48, v11")
            A("v_mov_b32 v13, 0"); A("v_mov_b32 v15, 0")
            A("v_bfe_u32 v16, v2, 3, 1"); A("v_lshlrev_b32 v16, 4, v16")
            A("v_bfe_u32 v17, v2, 4, 1"); A("v_add_u32 v16, v16, v17")
            A("v_lshl_add_u32 v16, v30, 1, v16")
            A("v_cmp_gt_u32 s[50:51], 32, v2")
            A("v_lshlrev_b32 v17, 4, v2")
            A("v_mov_b32 v25, s46")
            A("v_cndmask_b32 v16, 32, v16, s[50:51]")
            A("v_mov_b32 v27, s46")
            A("v_lshlrev_b32 v16, 4, v16")
            A("s_mul_i32 s48, s2, 640"); A(f"s_add_u32 s48, s48, {OP}")
        g.vm_wait(f"V{t}")
        done = order.index(f"V{t}")
        while nxt <= done + W and nxt < len(order): issue()
        g.nop(1)
        c = "0" if t == 0 else f"v[{vD}:{vD+3}]"
        A(f"v_mfma_f32_16x16x32_bf16 v[{vD}:{vD+3}], v[{a}:{a+3}], v[{vV+4*t}:{vV+4*t+3}], {c}")
    g.stamp(4)
    A("s_mov_b32 exec_hi, 0")
    g.nop(7)
    for r in range(4): A(f"v_mul_f32 v{12+r}, v24, v{vD+r}")
    A("s_mov_b32 exec_hi, -1")
    A(f"ds_write_b128 v11, v[12:15] offset:{L_OS}")
    A("s_waitcnt lgkmcnt(0)")
    A("s_barrier")
    A("s_cmp_lg_u32 s3, 7")
    A("s_cbranch_scc1 L_main_done")
    for w in range(8):
        A(f"ds_read_b128 v[{vK+4*w}:{vK+4*w+3}], v16 offset:{L_OS + 1024*w}")
    for lvl, step in enumerate((1, 2, 4)):
        for w in range(0, 8, 2 * step):
            if lvl == 0: A(f"s_waitcnt lgkmcnt({6 - w})")
            for hf in (0, 2):
                a_, b_ = vK + 4 * w + hf, vK + 4 * (w + step) + hf
                A(f"v_pk_add_f32 v[{a_}:{a_+1}], v[{a_}:{a_+1}], v[{b_}:{b_+1}]")
    A(f"v_cvt_pk_bf16_f32 v24, v{vK}, v{vK+1}")
    A(f"v_cvt_pk_bf16_f32 v26, v{vK+2}, v{vK+3}")
    A("s_mov_b32 exec_hi, 1")
    A(f"v_cndmask_b32 v24, v{vK}, v24, s[50:51]")
    A(f"v_cndmask_b32 v26, v{vK+2}, v26, s[50:51]")
    A(f"buffer_store_dwordx4 v[24:27], v17, s[36:39], s48 offen {ST}")
    g.stamp(5)
    dbgmax(2)
    g.stamp_write([5])
    g.label("L_main_done")
    A("s_waitcnt vmcnt(0)")
    A(f"s_cmp_lg_u32 s44, {HID}")
    A("s_cbranch_scc1 L_main_end")
    A("s_cmp_ge_u32 s3, 4")
    A("s_cbranch_scc1 L_main_end")
    A("s_barrier")
    vW = 32
    A("s_lshl_b32 s53, s45, 2"); A("s_add_u32 s53, s53, s3")
    A("s_lshl_b32 s48, s53, 5"); A("v_lshl_add_u32 v8, v30, 2, s48")
    A("global_load_dword v9, v8, s[4:5]")
    A(f"s_mul_i32 s48, s53, {48*128}"); A(f"s_add_u32 s48, s48, {FP}"); A("s_add_u32 s49, s48, 0x1000")
    A("v_cmp_gt_u32 s[50:51], 24, v2"); A("v_lshlrev_b32 v10, 4, v30"); g.nop(1)
    A("v_cndmask_b32 v10, v10, v17, s[50:51]")
    loads = [f"buffer_load_dwordx4 v[{vW+4*p}:{vW+4*p+3}], {'v10' if p == 5 else 'v17'}, s[36:39], {'s48' if p < 4 else 's49'} offen offset:{(p&3)*1024} {LD}" for p in range(6)]
    g.poll(loads, [vW + 4 * p + k for p in range(6) for k in (1, 3)], 24, 3)
    A(f"v_cndmask_b32 v{vW+20}, 0, v{vW+20}, s[50:51]")
    A(f"v_cndmask_b32 v{vW+22}, 0, v{vW+22}, s[50:51]")
    for p in range(1, 6):
        A(f"v_add_f32 v{vW}, v{vW}, v{vW+4*p}")
        A(f"v_add_f32 v{vW+2}, v{vW+2}, v{vW+4*p+2}")
    red8(vW, vW + 2, 24)
    for i, v in enumerate((vW, vW + 2)):
        d = 100 + i
        g.rbf(d, v)
        A(f"v_mul_f32 v24, {f32(-LOG2E)}, v{d}")
        A("v_exp_f32 v24, v24"); g.nop(1)
        A("v_add_f32 v24, 1.0, v24")
        A("v_rcp_f32 v24, v24"); g.nop(1)
        A(f"v_mul_f32 v{d}, v{d}, v24")
        g.rbf(d, d)
    A("v_lshlrev_b32 v102, 16, v9"); A("v_and_b32 v103, 0xffff0000, v9")
    A("s_lshl_b32 s48, s53, 12"); A(f"s_add_u32 s48, s48, {YP}")
    g.stamp(3)
    loads = [f"buffer_load_dwordx4 v[{vW+4*k}:{vW+4*k+3}], v17, s[36:39], s48 offen offset:{k*1024} {LD}" for k in range(4)]
    g.poll(loads, [vW + 4 * k + z for k in range(4) for z in (1, 3)], 24, 5)
    A(f"v_add_f32 v{vW}, v{vW}, v{vW+4}"); A(f"v_add_f32 v{vW+2}, v{vW+2}, v{vW+6}")
    A(f"v_add_f32 v{vW+8}, v{vW+8}, v{vW+12}"); A(f"v_add_f32 v{vW+10}, v{vW+10}, v{vW+14}")
    A(f"v_add_f32 v{vW}, v{vW}, v{vW+8}"); A(f"v_add_f32 v{vW+2}, v{vW+2}, v{vW+10}")
    red8(vW, vW + 2, 24)
    for i, v in enumerate((vW, vW + 2)):
        g.rbf(v, v)
        A(f"v_mul_f32 v{v}, v{v}, v{100+i}")
        g.rbf(v, v)
        A(f"v_add_f32 v{v}, v{v}, v{102+i}")
    A(f"v_cvt_pk_bf16_f32 v24, v{vW}, v{vW+2}")
    A("s_mov_b64 exec, 0xff")
    A("global_store_dword v8, v24, s[22:23]")
    g.stamp(8)
    dbgmax(1)
    A("s_cmp_lg_u32 s53, 0")
    A("s_cbranch_scc1 L_main_end")
    A("v_mov_b32 v24, s46")
    A("s_mov_b64 exec, 1")
    A("global_store_dword v3, v24, s[26:27]")
    g.label("L_main_end")
    if dbg:
        A("s_cmp_lg_u32 s3, 0"); A("s_cbranch_scc1 L_end")
        dbgmax(0, True)
    if stamps:
        A("s_cmp_lg_u32 s3, 0"); A("s_cbranch_scc1 L_end")
        A(f"s_cmp_eq_u32 s44, {HID}"); A("s_cbranch_scc1 L_sw")
        g.stamp(3); g.stamp(8)
        g.label("L_sw")
        g.stamp_write([0, 1, 4, 3, 8, 10, 11])
    A("s_endpgm")
    g.label("L_aux")
    A("v_lshlrev_b32 v1, 4, v2")
    A("v_and_b32 v10, 15, v2")
    A("v_lshrrev_b32 v11, 4, v2")
    A("v_mov_b32 v3, 0")
    A("s_mov_b32 s49, 0")
    A("s_waitcnt lgkmcnt(0)")
    A("s_load_dword s46, s[26:27], 0")
    g.srd(36, 26, None, WS_BYTES)
    A("s_cmp_eq_u32 s3, 1"); A("s_cbranch_scc1 L_setA")
    A("s_cmp_eq_u32 s3, 2"); A("s_cbranch_scc1 L_setD")
    A("s_cmp_eq_u32 s3, 3"); A("s_cbranch_scc1 L_aux3")
    A("s_lshl_b32 s48, s45, 19"); A("s_lshl_b32 s50, s44, 8"); A("s_add_u32 s48, s48, s50")
    A("s_add_u32 s50, s10, s48"); A("s_addc_u32 s51, s11, 0")
    A("v_lshlrev_b32 v8, 13, v11"); A("v_lshl_add_u32 v8, v10, 4, v8"); A("v_mov_b32 v9, 0")
    A("v_lshl_add_u64 v[8:9], v[8:9], 0, s[50:51]")
    A("s_mov_b32 s48, 0x8000")
    A("v_lshrrev_b32 v12, 1, v11"); A("v_lshl_add_u32 v12, v10, 1, v12"); A("s_lshl_b32 s50, s45, 5"); A("v_add_lshl_u32 v12, v12, s50, 2")
    A("v_and_b32 v13, 1, v11")
    A("v_mov_b32 v29, v1"); A("s_lshl_b32 s54, s2, 10"); A(f"s_add_u32 s54, s54, {QP}")
    A("v_mov_b32 v16, -1"); A("v_mov_b32 v17, -1"); A("v_mov_b32 v18, -1"); A("v_mov_b32 v19, -1")
    A(f"ds_write_b32 v3, v3 offset:{L_QF}")
    A(f"ds_write_b128 v3, v[16:19] offset:{L_M}")
    A(f"ds_write_b128 v3, v[16:19] offset:{L_M+16}")
    A("s_branch L_xload")
    g.label("L_setA")
    A("s_cmp_ge_u32 s2, 172"); A("s_cbranch_scc1 L_idle")
    A("s_lshr_b32 s53, s2, 2"); A("s_and_b32 s55, s2, 3")
    A("v_bfe_u32 v16, v2, 3, 1"); A("v_cmp_eq_u32 vcc, 1, v16")
    A("v_mov_b32 v8, s16"); A("v_mov_b32 v9, s17"); A("v_mov_b32 v12, s18"); A("v_mov_b32 v13, s19")
    A("v_cndmask_b32 v8, v8, v12, vcc"); A("v_cndmask_b32 v9, v9, v13, vcc")
    A("v_mul_u32_u24 v12, 5504, v11"); A("v_and_b32 v13, 7, v2"); A("v_lshl_add_u32 v12, v13, 4, v12")
    A(f"s_mul_i32 s48, s55, {64*5504}"); A("s_lshl_b32 s50, s53, 7"); A("s_add_u32 s48, s48, s50")
    A("v_add_u32 v12, s48, v12"); A("v_mov_b32 v13, 0")
    A("v_lshl_add_u64 v[8:9], v[8:9], 0, v[12:13]")
    A(f"s_mov_b32 s48, {4*5504}")
    A("v_lshl_add_u32 v12, v10, 2, v11"); A("s_lshl_b32 s50, s55, 6"); A("v_add_lshl_u32 v12, v12, s50, 2")
    A("s_lshl_b32 s53, s53, 1")
    A("v_add_u32 v13, s53, v16"); A("v_cmp_le_u32 vcc, 43, v13"); g.nop(2); A("v_cndmask_b32 v13, 0, 1, vcc")
    A("v_bfe_u32 v17, v2, 2, 1"); A("v_add_u32 v17, s53, v17"); A("v_cmp_le_u32 vcc, 43, v17")
    A("v_lshlrev_b32 v17, 12, v17"); A(f"v_subrev_u32 v18, {43*4096 - 2048}, v17"); A("v_cndmask_b32 v29, v17, v18, vcc")
    A("v_lshl_add_u32 v29, v16, 8, v29")
    A("v_and_b32 v17, 3, v2"); A("v_lshl_add_u32 v29, v17, 6, v29")
    A("v_and_b32 v17, 1, v11"); A("v_lshl_add_u32 v29, v17, 5, v29")
    A("v_lshrrev_b32 v17, 5, v2"); A("v_lshl_add_u32 v29, v17, 4, v29")
    A("s_lshl_b32 s54, s55, 9"); A(f"s_add_u32 s54, s54, {AP}")
    g.label("L_xload")
    A("global_load_dwordx4 v[4:7], v1, s[4:5]")
    A("global_load_dword v14, v12, s[4:5]")
    A("v_mov_b32 v15, -1")
    A("s_branch L_loads")
    g.label("L_setD")
    A("s_cmp_lt_u32 s2, 170"); A("s_cbranch_scc1 L_idle")
    A("s_sub_u32 s53, 255, s2"); A("s_and_b32 s55, s53, 1"); A("s_lshr_b32 s53, s53, 1")
    A("s_lshl_b32 s48, s53, 15"); A("s_lshl_b32 s50, s55, 9"); A("s_add_u32 s48, s48, s50")
    A("s_add_u32 s50, s20, s48"); A("s_addc_u32 s51, s21, 0")
    A("v_and_b32 v13, 1, v11"); A("v_lshlrev_b32 v8, 10, v13")
    A("v_lshrrev_b32 v16, 1, v11"); A("v_lshl_add_u32 v8, v16, 8, v8"); A("v_lshl_add_u32 v8, v10, 4, v8"); A("v_mov_b32 v9, 0")
    A("v_lshl_add_u64 v[8:9], v[8:9], 0, s[50:51]")
    A("s_movk_i32 s48, 2048")
    A("v_bfe_u32 v17, v2, 3, 1"); A("v_cmp_eq_u32 vcc, v16, v17"); g.nop(2); A("v_cndmask_b32 v15, 0, -1, vcc")
    A("v_lshrrev_b32 v17, 1, v10"); A("v_lshl_add_u32 v17, v16, 3, v17"); A(f"v_mul_u32_u24 v29, {48*128}, v17")
    A("v_and_b32 v17, 1, v10"); A("v_lshl_add_u32 v29, v17, 6, v29"); A("v_lshl_add_u32 v29, v13, 5, v29")
    A(f"s_mul_i32 s54, s55, {16*48*128}"); A("s_lshl_b32 s50, s53, 7"); A("s_add_u32 s54, s54, s50"); A(f"s_add_u32 s54, s54, {FP}")
    g.label("L_loads")
    for t in range(16):
        A(f"global_load_dwordx4 v[{vW+4*t}:{vW+4*t+3}], v[8:9], off nt")
        if t < 15: A("v_lshl_add_u64 v[8:9], v[8:9], 0, s[48:49]")
    A("s_waitcnt lgkmcnt(0)")
    A("s_barrier")
    tag()
    g.masks(160, 2, 24)
    A("v_mov_b32 v24, 0x01000100"); A("v_mov_b32 v25, 0x02020202"); A("v_mov_b32 v26, 0x0c0c0c0c")
    A("v_mad_u32_u24 v24, v13, 2, v24") if False else None
    A("v_mul_lo_u32 v25, v25, v13"); A("v_add_u32 v24, v24, v25")
    for r in range(4):
        A(f"v_and_b32 v{160+r}, v{160+r}, v15")
        A(f"v_bfi_b32 v{160+r}, v{160+r}, v24, v26")
    A("s_cmp_eq_u32 s3, 2"); A("s_cbranch_scc1 L_Dp")
    A("s_waitcnt vmcnt(16)")
    g.layernorm(4, 16, 12, 13, 24)
    A("v_lshlrev_b32 v16, 16, v14"); A("v_and_b32 v17, 0xffff0000, v14")
    for v in (16, 17):
        A(f"v_sub_f32 v{v}, v{v}, v12"); g.rbf(v, v); A(f"v_mul_f32 v{v}, v{v}, v13")
    A("v_cvt_pk_bf16_f32 v28, v16, v17")
    A("s_branch L_gemv")
    g.label("L_Dp")
    A("s_lshl_b32 s48, s53, 12"); A(f"s_add_u32 s48, s48, {AP}")
    vT = 100
    loads = [f"buffer_load_dwordx4 v[{vT+4*p}:{vT+4*p+3}], v1, s[36:39], s48 offen offset:{p*1024} {LD}" for p in range(4)]
    g.poll(loads, [vT + 4 * p + k for p in range(4) for k in (1, 3)], 24, 6, 8)
    for p in range(1, 4):
        A(f"v_add_f32 v{vT}, v{vT}, v{vT+4*p}"); A(f"v_add_f32 v{vT+2}, v{vT+2}, v{vT+4*p+2}")
    A(f"v_mov_b32 v16, v{vT}"); A(f"v_mov_b32 v17, v{vT+2}"); g.nop(1)
    A(f"v_permlane32_swap_b32 v16, v{vT}"); A(f"v_permlane32_swap_b32 v17, v{vT+2}")
    A(f"v_add_f32 v18, v16, v{vT}"); A(f"v_add_f32 v19, v17, v{vT+2}")
    A("v_mov_b32 v16, v18"); A("v_mov_b32 v17, v19"); g.nop(1)
    A("v_permlane16_swap_b32 v16, v18"); A("v_permlane16_swap_b32 v17, v19")
    for ga, up in ((16, 18), (17, 19)):
        g.rbf(ga, ga); g.rbf(up, up)
        A(f"v_mul_f32 v20, v{ga}, v{ga}")
        A(f"v_mul_f32 v20, {f32(0.044715)}, v20")
        A(f"v_fma_f32 v20, v20, v{ga}, v{ga}")
        A(f"v_mul_f32 v20, {f32(-2*0.7978845608028654*LOG2E)}, v20")
        A("v_exp_f32 v20, v20"); g.nop(1)
        A("v_add_f32 v20, 1.0, v20")
        A("v_rcp_f32 v20, v20"); g.nop(1)
        A(f"v_mul_f32 v{ga}, v{ga}, v20")
        g.rbf(ga, ga)
        A(f"v_mul_f32 v{ga}, v{ga}, v{up}")
    A("v_cvt_pk_bf16_f32 v28, v16, v17")
    g.label("L_gemv")
    g.nop(2)
    for t in range(16):
        a = 16 + 4 * (t & 1)
        A(f"v_mov_b32_dpp v24, v28 row_newbcast:{t} row_mask:0xf bank_mask:0xf")
        for r in range(4): A(f"v_perm_b32 v{a+r}, v24, v24, v{160+r}")
        A(f"s_waitcnt vmcnt({15-t})")
        g.nop(1)
        c = "0" if t == 0 else "v[164:167]"
        A(f"v_mfma_f32_16x16x32_bf16 v[164:167], v[{a}:{a+3}], v[{vW+4*t}:{vW+4*t+3}], {c}")
    A("v_mov_b32 v25, s46"); A("v_mov_b32 v27, s46")
    A("s_mov_b32 s50, 0xf0f0f0f0"); A("s_mov_b32 s51, 0xf0f0f0f0")
    g.nop(3)
    A("s_cmp_eq_u32 s3, 2"); A("s_cbranch_scc1 L_pubD")
    A("v_permlane32_swap_b32 v164, v166"); A("v_permlane32_swap_b32 v165, v167")
    g.nop(1)
    A("v_cndmask_b32 v24, v164, v166, s[50:51]")
    A("v_cndmask_b32 v26, v165, v167, s[50:51]")
    A(f"buffer_store_dwordx4 v[24:27], v29, s[36:39], s54 offen {ST}")
    A("s_cmp_lg_u32 s3, 0"); A("s_cbranch_scc1 L_tail")
    A("s_lshl_b32 s48, s44, 13"); A(f"s_add_u32 s48, s48, {QP}"); A("s_add_u32 s49, s48, 0x1000")
    loads = [f"buffer_load_dwordx4 v[{vW+4*p}:{vW+4*p+3}], v1, s[36:39], {'s48' if p < 4 else 's49'} offen offset:{(p&3)*1024} {LD}" for p in range(8)]
    g.poll(loads, [vW + 4 * p + k for p in range(8) for k in (1, 3)], 24, 1, 4)
    for p in range(1, 8):
        A(f"v_add_f32 v{vW}, v{vW}, v{vW+4*p}")
        A(f"v_add_f32 v{vW+2}, v{vW+2}, v{vW+4*p+2}")
    A("v_bfe_u32 v12, v2, 4, 1"); A("v_lshrrev_b32 v13, 5, v2")
    A("v_lshl_add_u32 v12, v12, 1, v13"); A("v_lshl_add_u32 v12, v10, 2, v12"); A("v_lshlrev_b32 v12, 2, v12")
    A(f"v_cvt_pk_bf16_f32 v13, v{vW}, v{vW+2}")
    A("v_mov_b32 v14, 1")
    A(f"ds_write_b32 v12, v13 offset:{L_Q}")
    A(f"ds_write_b32 v3, v14 offset:{L_QF}")
    g.stamp(2)
    A("s_branch L_tail")
    g.label("L_pubD")
    A("v_mov_b32 v24, v164"); A("v_mov_b32 v26, v165")
    A("v_mov_b32 v20, v166"); A("v_mov_b32 v22, v167"); A("v_mov_b32 v21, s46"); A("v_mov_b32 v23, s46")
    A(f"buffer_store_dwordx4 v[24:27], v29, s[36:39], s54 offen {ST}")
    A(f"buffer_store_dwordx4 v[20:23], v29, s[36:39], s54 offen offset:16 {ST}")
    A("s_branch L_tail")
    g.label("L_aux3")
    if PF:
        A("s_cmp_ge_u32 s44, 4"); A("s_cbranch_scc1 L_idle")
        A("s_getpc_b64 s[50:51]")
        g.label("L_pc")
        A(f"s_sub_u32 s50, s50, L_pc-{NAME}_kernel"); A("s_subb_u32 s51, s51, 0")
        A("v_lshlrev_b32 v12, 7, v2")
        A("global_load_dword v150, v12, s[50:51]")
    g.label("L_idle")
    A("s_waitcnt lgkmcnt(0)")
    A("s_barrier")
    tag()
    g.label("L_tail")
    A("s_lshl_b32 s53, s45, 2"); A("s_add_u32 s53, s53, s3")
    A("v_and_b32 v13, 7, v2"); A("v_mul_u32_u24 v13, 640, v13")
    A("v_bfe_u32 v10, v2, 3, 1"); A("v_lshl_add_u32 v10, v10, 6, v13"); A("v_lshl_add_u32 v10, v11, 4, v10")
    A(f"s_mul_i32 s48, s44, {8*640}"); A(f"s_add_u32 s48, s48, {OP}")
    A("v_bfe_u32 v12, v2, 2, 2"); A("v_lshl_add_u32 v12, v11, 4, v12"); A("v_lshlrev_b32 v12, 7, v12")
    A("v_and_b32 v14, 3, v2"); A("v_lshl_add_u32 v12, v14, 3, v12")
    A("s_lshl_b32 s49, s3, 5"); A(f"s_add_u32 s49, s49, {L_WO}"); A("v_add_u32 v12, s49, v12")
    A("s_mov_b32 s50, 0"); A("s_mov_b32 s51, -1")
    A("s_lshl_b32 s54, s53, 5"); A("s_add_u32 s54, s54, s44"); A("s_lshl_b32 s54, s54, 7"); A(f"s_add_u32 s54, s54, {YP}")
    A("v_lshlrev_b32 v14, 3, v2"); A("v_mov_b32 v25, s46")
    A("s_waitcnt vmcnt(0) lgkmcnt(0)")
    A("s_barrier")
    g.stamp(9)
    loads = [f"buffer_load_dwordx4 v[{vW+4*k}:{vW+4*k+3}], v10, s[36:39], s48 offen offset:{k*128} {LD}" for k in range(4)]
    loads.append(f"buffer_load_dwordx4 v[{vW+16}:{vW+19}], v13, s[36:39], s48 offen offset:512 {LD}")
    g.poll(loads, [vW + 4 * k + z for k in range(5) for z in (1, 3)], 24, 4)
    g.stamp(6)
    A("s_barrier")
    vB = 64
    for f in range(2):
        for hh in range(2):
            for z in range(2):
                b = vB + 8 * hh + 4 * f + 2 * z
                A(f"ds_read_b64_tr_b16 v[{b}:{b+1}], v12 offset:{(64*hh + 8*f + 4*z)*128}")
    vm, vl = vW + 16, vW + 18
    A(f"v_max_f32_dpp v26, v{vm}, v{vm} row_ror:4 row_mask:0xf bank_mask:0xf")
    a = vW
    A(f"v_mov_b32 v{a+1}, v{a+2}"); A(f"v_mov_b32 v{a+2}, v{a+4}")
    A("v_max_f32_dpp v26, v26, v26 row_ror:2 row_mask:0xf bank_mask:0xf")
    A(f"v_mov_b32 v{a+3}, v{a+6}")
    a = vW + 8
    A(f"v_mov_b32 v{a+1}, v{a+2}")
    A("v_max_f32_dpp v26, v26, v26 row_ror:1 row_mask:0xf bank_mask:0xf")
    A(f"v_mov_b32 v{a+2}, v{a+4}"); A(f"v_mov_b32 v{a+3}, v{a+6}")
    A(f"v_sub_f32 v26, v{vm}, v26")
    A(f"v_mul_f32 v26, {f32(LOG2E)}, v26")
    A("v_exp_f32 v26, v26")
    for f in range(2):
        A(f"s_waitcnt lgkmcnt({4 - 4*f})")
        for hh in range(2):
            d = 16 + 4 * hh; a = vW + 8 * f; b = vB + 8 * hh + 4 * f
            c = "0" if f == 0 else f"v[{d}:{d+3}]"
            A(f"v_mfma_f32_16x16x32_bf16 v[{d}:{d+3}], v[{a}:{a+3}], v[{b}:{b+3}], {c}")
    A(f"v_mul_f32 v27, v26, v{vl}")
    for r_ in (4, 2, 1):
        g.nop(2)
        A(f"v_add_f32_dpp v27, v27, v27 row_ror:{r_} row_mask:0xf bank_mask:0xf")
    A("v_rcp_f32 v27, v27")
    for r in range(4): A(f"v_cndmask_b32 v{16+r}, v{16+r}, v{20+r}, s[50:51]")
    A("v_mul_f32_dpp v24, v26, v16 row_newbcast:0 row_mask:0x5 bank_mask:0xf")
    A("v_mul_f32_dpp v24, v26, v16 row_newbcast:4 row_mask:0xa bank_mask:0xf")
    for r in range(1, 4):
        A(f"v_fmac_f32_dpp v24, v26, v{16+r} row_newbcast:{r} row_mask:0x5 bank_mask:0xf")
        A(f"v_fmac_f32_dpp v24, v26, v{16+r} row_newbcast:{4+r} row_mask:0xa bank_mask:0xf")
    A("v_mul_f32 v24, v24, v27")
    for sw in ("16", "32"):
        A("v_mov_b32 v16, v24"); g.nop(2)
        A(f"v_permlane{sw}_swap_b32 v16, v24")
        A("v_add_f32 v24, v24, v16")
    A("s_mov_b64 exec, 0xffff")
    A(f"buffer_store_dwordx2 v[24:25], v14, s[36:39], s54 offen {ST}")
    g.stamp(7)
    if stamps:
        A("s_cmp_lg_u32 s3, 0"); A("s_cbranch_scc1 L_end")
        g.stamp_write([2, 6, 7, 9])
    g.label("L_fail")
    g.label("L_end")
    A("s_endpgm")
    g.L += ['.section .rodata,"a"', ".p2align 6", f".amdhsa_kernel {NAME}_kernel",
            "  .amdhsa_next_free_vgpr 168", "  .amdhsa_next_free_sgpr 96", "  .amdhsa_accum_offset 168",
            "  .amdhsa_group_segment_fixed_size 0", "  .amdhsa_kernarg_size 96", "  .amdhsa_user_sgpr_count 2",
            "  .amdhsa_user_sgpr_kernarg_segment_ptr 1", "  .amdhsa_system_sgpr_workgroup_id_x 1", ".end_amdhsa_kernel"]
    return "\n".join(g.L) + "\n"

if __name__ == "__main__":
    open("v2.s", "w").write(gen(False))
    open("v2_st.s", "w").write(gen(True))
    open("v2_dbg.s", "w").write(gen(False, dbg=True))
```
